```python
import torch

def _softmax(x, axis=-1):
    return torch.softmax(x, dim=axis)
def _gelu(x):
    return torch.nn.functional.gelu(x, approximate="tanh")
def _silu(x):
    return torch.nn.functional.silu(x)
def _sigmoid(x):
    return torch.sigmoid(x)
def _layernorm(x, axis=-1, eps=1e-5):
    m = x.mean(dim=axis, keepdim=True)
    v = x.var(dim=axis, keepdim=True, unbiased=False)
    return (x - m) / torch.sqrt(v + eps)
def _scatter_add(tgt, idx, src, axis=0):
    return tgt.clone().index_add_(axis, idx, src)
def _segment_sum(src, seg, n):
    out = torch.zeros((n,) + src.shape[1:], dtype=src.dtype)
    return out.index_add_(0, seg, src)
def _pad(x, pw):
    flat = tuple(v for pair in reversed(pw) for v in pair)
    return torch.nn.functional.pad(x, flat)

kernel_name = 'gated_mix__spectral_gfnet__mixer_token_mlp__prompt'

def setup_inputs():

    _w = (lambda a: (lambda t: t.to(torch.bfloat16) if t.is_floating_point() else t)(torch.as_tensor(a)))
    def _A_setup():
        B, S, D = 1, 2048, 640
        Df = D // 2 + 1
        return {
            "x": _w((lambda *s: torch.randn(*s, dtype=torch.bfloat16) * 0.05)(B, S, D)),
            "w_r": _w((lambda *s: torch.randn(*s, dtype=torch.bfloat16) * 0.8)(S, Df) * 0.02),
            "w_i": _w((lambda *s: torch.randn(*s, dtype=torch.bfloat16) * 0.8)(S, Df) * 0.02),
        }
    _A_in = _A_setup()

    def _B_setup():
        B, S, D, F = 1, 2048, 640, 1728
        return {
            "x": _w((lambda *s: torch.randn(*s, dtype=torch.bfloat16) * 0.05)(B, S, D)),
            "w1": _w((lambda *s: torch.randn(*s, dtype=torch.bfloat16) * 0.2)(S, F) * (S ** -0.5)),
            "b1": _w((lambda *s: torch.randn(*s, dtype=torch.bfloat16) * 3.2)(F) * 0.02),
            "w2": _w((lambda *s: torch.randn(*s, dtype=torch.bfloat16) * 0.05)(F, S) * (F ** -0.5)),
            "b2": _w((lambda *s: torch.randn(*s, dtype=torch.bfloat16) * 0.1)(S) * 0.02),
        }
    _B_in = _B_setup()

    return {
        "A_x": _A_in["x"],
        "A_w_r": _A_in["w_r"],
        "A_w_i": _A_in["w_i"],
        "B_x": _B_in["x"],
        "B_w1": _B_in["w1"],
        "B_b1": _B_in["b1"],
        "B_w2": _B_in["w2"],
        "B_b2": _B_in["b2"],
        "gate_w": _w((lambda *s: torch.randn(*s, dtype=torch.bfloat16) * 0.05)(640) * 16.0),
    }

def reference(A_x, A_w_r, A_w_i, B_x, B_w1, B_b1, B_w2, B_b2, gate_w):
    def _A_ref(x, w_r, w_i):
        B, S, D = x.shape
        X = (lambda x, axes=(-2,-1): torch.fft.rfft2(x.float(), dim=axes))(x, axes=(-2, -1))
        W = w_r + 1j * w_i
        X = X * W
        y = (lambda x, s, axes=(-2,-1): torch.fft.irfft2(x, s=s, dim=axes).to(torch.bfloat16))(X, (S, D), axes=(-2, -1))
        return y

    def _B_ref(x, w1, b1, w2, b2):
        B, S, D = x.shape
        h = _layernorm(x, axis=-1)
        u = torch.einsum("bsd,sf->bdf", h, w1) + b1
        u = _gelu(u)
        y = torch.einsum("bdf,fs->bds", u, w2) + b2
        return (lambda x, *d: x.permute(*d))(y, 0, 2, 1)

    x = A_x
    g = _sigmoid((x * gate_w).sum(-1, keepdims=True))
    a = _A_ref(x, A_w_r, A_w_i)
    b = _B_ref(x, B_w1, B_b1, B_w2, B_b2)
    return g * a + (1 - g) * b
```

```python
import re

TRANS = ('v_exp_f32','v_log_f32','v_rcp_f32','v_rsq_f32','v_sqrt_f32','v_sin_f32','v_cos_f32','v_rcp_iflag_f32',
         'v_exp_f16','v_log_f16','v_rcp_f16','v_rsq_f16','v_sqrt_f16','v_sin_f16','v_cos_f16')

def regs_of(tok):
    tok = tok.strip()
    neg = tok.lstrip('-')
    m = re.fullmatch(r'abs\((.*)\)', neg)
    if m: neg = m.group(1)
    neg = neg.strip('|')
    m = re.fullmatch(r'([vsa])(\d+)', neg)
    if m: return [(m.group(1), int(m.group(2)))]
    m = re.fullmatch(r'([vsa])\[(\d+):(\d+)\]', neg)
    if m: return [(m.group(1), i) for i in range(int(m.group(2)), int(m.group(3)) + 1)]
    if neg == 'vcc': return [('x', 'vcc')]
    if neg in ('vcc_lo', 'vcc_hi'): return [('x', 'vcc')]
    if neg == 'exec' or neg in ('exec_lo', 'exec_hi'): return [('x', 'exec')]
    if neg == 'm0': return [('x', 'm0')]
    if neg == 'scc': return [('x', 'scc')]
    return []

class Inst:
    def __init__(self, text):
        self.text = text.strip()
        t = self.text.split(';')[0].strip()
        parts = t.split(None, 1)
        self.mn = parts[0]
        rest = parts[1] if len(parts) > 1 else ''
        ops = []; depth = 0; cur = ''
        for ch in rest:
            if ch in '[(': depth += 1
            if ch in '])': depth -= 1
            if ch == ',' and depth == 0:
                ops.append(cur.strip()); cur = ''
            else: cur += ch
        if cur.strip(): ops.append(cur.strip())
        self.mods = ''
        if ops:
            last = ops[-1].split(None, 1)
            if len(last) > 1:
                ops[-1] = last[0]; self.mods = last[1]
        self.ops = ops
        self.classify()

    def classify(self):
        mn = self.mn
        base = re.sub(r'_(e32|e64|dpp|sdwa)$', '', mn)
        self.base = base
        self.is_mfma = mn.startswith('v_mfma') or mn.startswith('v_smfmac')
        self.is_valu = mn.startswith('v_') and not self.is_mfma
        self.is_trans = base in TRANS
        self.is_vmem = mn.startswith(('buffer_', 'global_', 'flat_', 'scratch_'))
        self.is_ds = mn.startswith('ds_')
        self.is_salu = mn.startswith('s_')
        self.is_dpp = mn.endswith('_dpp') or 'row_' in self.mods or 'quad_perm' in self.mods or 'wave_' in self.mods
        self.is_branch = mn.startswith('s_cbranch') or mn == 's_branch'
        self.lds_dma = self.is_vmem and (re.search(r'\blds\b', self.mods) is not None or 'load_lds' in mn)
        ops = self.ops
        d = []; u = []
        R = lambda i: regs_of(ops[i]) if i < len(ops) else []
        allr = lambda a: [r for i in range(a, len(ops)) for r in regs_of(ops[i])]
        self.passes = 0
        self.srcC = []; self.srcAB = []
        if self.is_mfma:
            d = R(0); self.srcAB = R(1) + R(2); self.srcC = R(3); u = self.srcAB + self.srcC
            if '32x32x16' in mn or '32x32x8' in mn or '32x32x32_i8' in mn: self.passes = 8
            elif '16x16x32' in mn or '16x16x16' in mn: self.passes = 4
            else: raise Exception('unknown mfma passes ' + mn)
        elif self.is_valu:
            if base.startswith('v_cmpx'):
                raise Exception('avoid v_cmpx')
            if base.startswith('v_cmp'):
                d = R(0); u = allr(1)
            elif base in ('v_readfirstlane_b32', 'v_readlane_b32'):
                d = R(0); u = allr(1)
            elif base in ('v_permlane32_swap_b32', 'v_permlane16_swap_b32'):
                d = R(0) + R(1); u = R(0) + R(1)
            elif base in ('v_add_co_u32', 'v_sub_co_u32', 'v_subrev_co_u32'):
                d = R(0) + R(1); u = allr(2)
            elif base in ('v_addc_co_u32', 'v_subb_co_u32'):
                d = R(0) + R(1); u = allr(2)
            elif base in ('v_fmac_f32', 'v_pk_fmac_f16', 'v_dot2c_f32_bf16', 'v_fmac_f16', 'v_writelane_b32'):
                d = R(0); u = R(0) + allr(1)
            elif base == 'v_cndmask_b32':
                d = R(0); u = allr(1)
                if len(ops) == 3: u += [('x', 'vcc')]
            elif base == 'v_nop':
                pass
            else:
                d = R(0); u = allr(1)
            if self.is_dpp and base not in ('v_mov_b32',):
                pass
            if self.is_dpp: u = u + R(0)
            u = u + [('x', 'exec')]
        elif self.is_vmem:
            if mn.startswith('buffer_'):
                if mn in ('buffer_inv', 'buffer_wbl2'): pass
                elif 'load' in mn:
                    if self.lds_dma: u = allr(0) + [('x', 'm0')]
                    else: d = R(0); u = allr(1)
                elif 'store' in mn: u = allr(0)
                elif 'atomic' in mn:
                    u = allr(0)
                    if 'sc0' in self.mods: d = R(0)
            else:
                if 'load_lds' in mn: u = allr(0) + [('x', 'm0')]
                elif 'load' in mn: d = R(0); u = allr(1)
                elif 'store' in mn: u = allr(0)
                elif 'atomic' in mn:
                    if 'sc0' in self.mods: d = R(0); u = allr(1)
                    else: u = allr(0)
        elif self.is_ds:
            if mn.startswith(('ds_read', 'ds_bpermute', 'ds_permute', 'ds_swizzle')) : d = R(0); u = allr(1)
            elif mn.startswith('ds_add_rtn') : d = R(0); u = allr(1)
            else: u = allr(0)
        elif self.is_salu:
            if mn in ('s_waitcnt', 's_nop', 's_barrier', 's_endpgm', 's_sleep', 's_setprio', 's_branch') or mn.startswith('s_cbranch'):
                if mn in ('s_cbranch_scc0', 's_cbranch_scc1'): u = [('x', 'scc')]
                if mn in ('s_cbranch_vccz', 's_cbranch_vccnz'): u = [('x', 'vcc')]
                if mn in ('s_cbranch_execz', 's_cbranch_execnz'): u = [('x', 'exec')]
            elif mn.startswith('s_cmp'):
                u = allr(0); d = [('x', 'scc')]
            elif 'saveexec' in mn:
                d = R(0) + [('x', 'exec')]; u = allr(1) + [('x', 'exec')]
            elif mn.startswith('s_load') or mn.startswith('s_buffer_load') or mn in ('s_memtime', 's_memrealtime', 's_getreg_b32'):
                d = R(0); u = allr(1)
            else:
                d = R(0); u = allr(1)
        self.defs = set(d); self.uses = set(u)
        self.wide_store = (self.is_vmem and ('store_dwordx4' in mn or 'store_dwordx3' in mn))
        if self.wide_store:
            self.store_data = set(R(0) if mn.startswith('buffer_') else R(1))
        self.states = 1
        if mn == 's_nop': self.states = int(ops[0], 0) + 1

def vset(s): return {r for r in s if r[0] in 'va'}
def sset(s): return {r for r in s if r[0] == 's' or r == ('x', 'vcc')}

def required(p, c):
    n = 0
    pv = vset(p.defs)
    if p.is_valu:
        if c.is_mfma and pv & vset(c.uses): n = max(n, 2)
        if p.is_trans and c.is_valu and not c.is_trans and pv & c.uses: n = max(n, 1)
        if p.is_trans and (c.is_mfma) and pv & c.uses: n = max(n, 2)
        ps = sset(p.defs)
        if ps:
            if (c.is_valu) and ps & c.uses:
                n = max(n, 4 if c.base in ('v_readlane_b32', 'v_writelane_b32') else 2)
            if c.is_vmem and ps & c.uses: n = max(n, 5)
            if c.is_salu and ps & c.uses: n = max(n, 1)
        if c.is_valu and c.base in ('v_readfirstlane_b32', 'v_readlane_b32') and pv & c.uses: n = max(n, 1)
        if c.is_valu and c.is_dpp and pv & c.uses: n = max(n, 2)
        if c.is_valu and c.base.startswith('v_permlane') and pv & c.uses: n = max(n, 2)
        if ('op_sel' in p.mods or p.mn.endswith('_sdwa')) and c.is_valu and pv & (c.uses | c.defs): n = max(n, 1)
    if p.is_mfma:
        D = vset(p.defs)
        big = {4: 8, 8: 12}[p.passes]; ovl = {4: 6, 8: 10}[p.passes]; war = {4: 3, 8: 7}[p.passes]
        if c.is_mfma:
            if D & set(c.srcAB): n = max(n, big)
            if D & set(c.srcC):
                if not (set(c.srcC) == D and c.passes == p.passes): n = max(n, ovl)
            elif D & c.defs:
                n = max(n, ovl)
        elif c.is_valu or c.is_vmem or c.is_ds:
            if D & (c.uses | c.defs): n = max(n, big)
        if c.is_valu and set(p.srcC) & c.defs: n = max(n, war)
    if p.wide_store and (p.store_data & c.defs):
        n = max(n, 2 if c.is_valu else 1)
    if p.is_salu and ('x', 'm0') in p.defs and (c.lds_dma or 'addtid' in c.mn): n = max(n, 1)
    if p.is_salu and ('x', 'exec') in p.defs and c.is_valu and c.is_dpp: n = max(n, 1)
    return n

MAXW = 13

class Asm:
    def __init__(self):
        self.items = []
    def I(self, text):
        for ln in text.split('\n'):
            ln = ln.strip()
            if not ln: continue
            if ln.startswith(';'): self.items.append(('t', '    ' + ln)); continue
            self.items.append(('i', Inst(ln)))
    __call__ = I
    def L(self, name): self.items.append(('l', name))
    def T(self, text): self.items.append(('t', text))
    def C(self, text): self.items.append(('t', '    ; ' + text))

    def pad(self):
        items = self.items
        labels = {}
        for k, it in enumerate(items):
            if it[0] == 'l': labels[it[1]] = k
            if it[0] == 'i': it[1].pre = 0
        br = {}
        for k, it in enumerate(items):
            if it[0] == 'i' and it[1].is_branch:
                tgt = it[1].ops[0]
                if tgt in labels: br.setdefault(labels[tgt], []).append(k)
        pc = {}
        def preds(k):
            if k in pc: return pc[k]
            out = []; j = k - 1
            while j >= 0:
                it = items[j]
                if it[0] == 'i':
                    if it[1].mn not in ('s_branch', 's_endpgm'): out.append(j)
                    break
                if it[0] == 'l':
                    out += br.get(j, [])
                j -= 1
            pc[k] = out
            return out
        total = 0
        changed = True
        while changed:
            changed = False
            for k, it in enumerate(items):
                if it[0] != 'i': continue
                c = it[1]
                if c.mn == 's_nop': continue
                need = 0
                seen = {}
                stack = [(p, c.pre) for p in preds(k)]
                while stack:
                    j, dist = stack.pop()
                    if seen.get(j, 99) <= dist: continue
                    seen[j] = dist
                    p = items[j][1]
                    r = required(p, c)
                    if r > dist: need = max(need, r - dist)
                    nd = dist + p.states + p.pre
                    if nd < MAXW:
                        for q in preds(j): stack.append((q, nd))
                if need > 0:
                    c.pre += need; total += need; changed = True
        return total

    def text(self):
        out = []
        for it in self.items:
            if it[0] == 'i':
                n = getattr(it[1], 'pre', 0)
                while n > 0:
                    m = min(n, 16); out.append('    s_nop %d' % (m - 1)); n -= m
                out.append('    ' + it[1].text)
            elif it[0] == 'l': out.append(it[1] + ':')
            else: out.append(it[1])
        return '\n'.join(out) + '\n'
```

```python
import struct, math
from asmgen import Asm

S, D, F = 2048, 640, 1728
H_OFF   = 0
X1_OFF  = H_OFF + 64*40*1024
G_OFF   = X1_OFF + 80*2048*16
FI_OFF  = G_OFF + 2048*8
U_OFF   = FI_OFF + 800*1024
Z_OFF   = U_OFF + 54*40*1024
WS_END  = Z_OFF + 80*2048*16

def f32(x):
    return '0x%08x' % struct.unpack('<I', struct.pack('<f', x))[0]

class RA:
    def __init__(self, cls, start, limit):
        self.cls = cls; self.n = start; self.limit = limit; self.hi = start
    def a(self, cnt=1, align=1):
        while self.n % align: self.n += 1
        r = self.n; self.n += cnt
        assert self.n <= self.limit, 'out of %s regs' % self.cls
        self.hi = max(self.hi, self.n)
        return r
    def mark(self): return self.n
    def reset(self, m): self.n = m

def v(i, n=1): return 'v%d' % i if n == 1 else 'v[%d:%d]' % (i, i + n - 1)
def s(i, n=1): return 's%d' % i if n == 1 else 's[%d:%d]' % (i, i + n - 1)

def srd(a, r, base, nbytes):
    a('s_mov_b32 s%d, s%d' % (r, base))
    a('s_and_b32 s%d, s%d, 0xffff' % (r + 1, base + 1))
    a('s_mov_b32 s%d, 0x%x' % (r + 2, nbytes))
    a('s_mov_b32 s%d, 0x20000' % (r + 3))

def wave_sum(a, regs):
    for ctl in ('row_shr:1', 'row_shr:2', 'row_shr:4', 'row_shr:8'):
        for r in regs:
            a('v_add_f32_dpp v%d, v%d, v%d %s row_mask:0xf bank_mask:0xf bound_ctrl:0' % (r, r, r, ctl))
    for r in regs:
        a('v_add_f32_dpp v%d, v%d, v%d row_bcast:15 row_mask:0xa bank_mask:0xf' % (r, r, r))
    for r in regs:
        a('v_add_f32_dpp v%d, v%d, v%d row_bcast:31 row_mask:0xc bank_mask:0xf' % (r, r, r))

def rbf(a, dst, src):
    a('v_cvt_pk_bf16_f32 v%d, %s, %s' % (dst, src, src))
    a('v_lshlrev_b32 v%d, 16, v%d' % (dst, dst))

def kernel_header(a, name):
    a.T('.globl %s' % name)
    a.T('.p2align 8')
    a.T('.type %s,@function' % name)
    a.L(name)

def kernel_desc(name, vgprs, sgprs=102, accum=None):
    if accum is None: accum = (vgprs + 3) // 4 * 4
    return ('.amdhsa_kernel %s\n  .amdhsa_next_free_vgpr %d\n  .amdhsa_next_free_sgpr %d\n  .amdhsa_accum_offset %d\n'
            '  .amdhsa_group_segment_fixed_size 0\n  .amdhsa_kernarg_size 96\n  .amdhsa_user_sgpr_count 2\n'
            '  .amdhsa_user_sgpr_kernarg_segment_ptr 1\n  .amdhsa_system_sgpr_workgroup_id_x 1\n'
            '.end_amdhsa_kernel\n') % (name, vgprs, sgprs, accum)
```

```python
from common import *

CD = 0
F64 = 65536
T1 = F64 + 16384
T2 = T1 + 16384
ZS = T2 + 16384
W0S = ZS + 16400
W3S = W0S + 8208
FFT_LDS = W3S + 8208
SC = 2.0 / (640 * 2048)

def mfma32(a, d, A, B, c):
    a('v_mfma_f32_32x32x16_bf16 %s, %s, %s, %s' % (v(d, 16), v(A, 4), v(B, 4), c if c == '0' else v(c, 16)))

def gen_fft(a, name, V):
    lane = V.lane
    a('s_load_dwordx2 s[4:5], s[0:1], 8')
    a('s_load_dwordx2 s[6:7], s[0:1], 16')
    lam = V.a(); hh = V.a(); lamf = V.a(); hf = V.a()
    a('v_and_b32 v%d, 31, v%d' % (lam, lane))
    a('v_lshrrev_b32 v%d, 5, v%d' % (hh, lane))
    v16 = V.a()
    a('v_lshlrev_b32 v%d, 4, v0' % v16)
    XL = V.a(32, 4)
    a('s_lshl_b32 s41, s40, 16')
    a('s_add_u32 s42, s41, %d' % X1_OFF)
    for q in range(8):
        a('s_add_u32 s43, s42, %d' % (q * 8192))
        a('buffer_load_dwordx4 %s, v%d, s[16:19], s43 offen' % (v(XL + 4 * q, 4), v16))
    a('s_waitcnt lgkmcnt(0)')
    srd(a, 8, 4, S * 321 * 2)
    srd(a, 12, 6, S * 321 * 2)
    WR = V.a(16, 4); WI = V.a(16, 4); vw = V.a()
    a('v_mul_u32_u24 v%d, 642, v0' % vw)
    a('s_lshl_b32 s43, s40, 4')
    for q in range(4):
        a('s_add_u32 s44, s43, %d' % (q * 512 * 642))
        a('buffer_load_dwordx4 %s, v%d, s[8:11], s44 offen' % (v(WR + 4 * q, 4), vw))
        a('buffer_load_dwordx4 %s, v%d, s[12:15], s44 offen' % (v(WI + 4 * q, 4), vw))
    W3 = V.a(8)
    a('s_cmp_eq_u32 s40, 0')
    a('s_cbranch_scc0 %s_nosp1' % name)
    for q in range(4):
        a('s_mov_b32 s44, %d' % (q * 512 * 642 + 640))
        a('buffer_load_ushort v%d, v%d, s[8:11], s44 offen' % (W3 + 2 * q, vw))
        a('buffer_load_ushort v%d, v%d, s[12:15], s44 offen' % (W3 + 2 * q + 1, vw))
    a.L('%s_nosp1' % name)

    a('v_cvt_f32_u32 v%d, v%d' % (lamf, lam))
    a('v_cvt_f32_u32 v%d, v%d' % (hf, hh))
    Fr = V.a(8, 4); Fi = V.a(8, 4)
    m = V.mark()
    th = V.a(); arg = V.a(); c0 = V.a(); c1 = V.a(); s0 = V.a(); s1 = V.a(); sg = V.a(); ad = V.a(); fa = V.a()
    O1 = V.a(4, 4); O2 = V.a(4, 4)
    a('v_mul_f32 v%d, %s, v%d' % (th, f32(1 / 32.), lamf))
    for jj in range(2):
        a('v_fmaak_f32 v%d, 4.0, v%d, %s' % (arg, hf, f32(8.0 * jj)))
        a('v_mul_f32 v%d, v%d, v%d' % (arg, arg, th))
        for ip in range(2):
            a('v_fract_f32 v%d, v%d' % (fa, arg)); a('v_cos_f32 v%d, v%d' % (c0, fa)); a('v_sin_f32 v%d, v%d' % (s0, fa))
            a('v_add_f32 v%d, v%d, v%d' % (arg, arg, th))
            a('v_fract_f32 v%d, v%d' % (fa, arg)); a('v_cos_f32 v%d, v%d' % (c1, fa)); a('v_sin_f32 v%d, v%d' % (s1, fa))
            a('v_add_f32 v%d, v%d, v%d' % (arg, arg, th))
            a('v_cvt_pk_bf16_f32 v%d, v%d, v%d' % (Fr + 2 * jj + ip, c0, c1))
            a('v_cvt_pk_bf16_f32 v%d, -v%d, -v%d' % (Fi + 2 * jj + ip, s0, s1))
    a('v_and_b32 v%d, 1, v%d' % (sg, lam))
    a('v_mul_u32_u24 v%d, 0x8000, v%d' % (sg, sg))
    a('v_lshl_or_b32 v%d, v%d, 16, v%d' % (sg, sg, sg))
    for k in range(4):
        a('v_xor_b32 v%d, v%d, v%d' % (Fr + 4 + k, Fr + k, sg))
        a('v_xor_b32 v%d, v%d, v%d' % (Fi + 4 + k, Fi + k, sg))
    a('s_lshr_b32 s44, s3, 2'); a('s_and_b32 s45, s3, 3')
    a('s_lshl_b32 s46, s44, 5')
    a('v_add_u32 v%d, s46, v%d' % (th, lam))
    a('v_cvt_f32_u32 v%d, v%d' % (th, th))
    a('v_mul_f32 v%d, %s, v%d' % (th, f32(1 / 64.), th))
    a('s_lshl_b32 s46, s45, 4')
    for jj in range(2):
        a('v_lshlrev_b32 v%d, 2, v%d' % (arg, hh))
        a('v_add_u32 v%d, s46, v%d' % (arg, arg))
        if jj: a('v_add_u32 v%d, 8, v%d' % (arg, arg))
        a('v_cvt_f32_u32 v%d, v%d' % (arg, arg))
        a('v_mul_f32 v%d, v%d, v%d' % (arg, arg, th))
        for ip in range(2):
            a('v_fract_f32 v%d, v%d' % (fa, arg)); a('v_cos_f32 v%d, v%d' % (c0, fa)); a('v_sin_f32 v%d, v%d' % (s0, fa))
            a('v_add_f32 v%d, v%d, v%d' % (arg, arg, th))
            a('v_fract_f32 v%d, v%d' % (fa, arg)); a('v_cos_f32 v%d, v%d' % (c1, fa)); a('v_sin_f32 v%d, v%d' % (s1, fa))
            a('v_add_f32 v%d, v%d, v%d' % (arg, arg, th))
            a('v_cvt_pk_bf16_f32 v%d, v%d, v%d' % (O1 + 2 * jj + ip, c0, c1))
            a('v_cvt_pk_bf16_f32 v%d, -v%d, -v%d' % (O2 + 2 * jj + ip, s0, s1))
    a('s_lshl_b32 s46, s3, 10')
    a('s_add_u32 s46, s46, %d' % F64)
    a('v_lshlrev_b32 v%d, 4, v%d' % (ad, lane))
    a('v_add_u32 v%d, s46, v%d' % (ad, ad))
    a('ds_write_b128 v%d, %s offset:%d' % (ad, v(O1, 4), 0))
    a('ds_write_b128 v%d, %s offset:%d' % (ad, v(O2, 4), 8192))
    a('s_lshl_b32 s46, s3, 3')
    a('v_lshlrev_b32 v%d, 2, v%d' % (arg, hh))
    a('v_add_u32 v%d, s46, v%d' % (arg, arg))
    a('v_cvt_f32_u32 v%d, v%d' % (arg, arg))
    a('v_mul_f32 v%d, %s, v%d' % (th, f32(1 / 2048.), lamf))
    a('v_mul_f32 v%d, v%d, v%d' % (arg, arg, th))
    O3 = V.a(4, 4); O4 = V.a(4, 4)
    for i in range(4):
        a('v_cos_f32 v%d, v%d' % (O3 + i, arg)); a('v_sin_f32 v%d, v%d' % (O4 + i, arg))
        if i < 3: a('v_add_f32 v%d, v%d, v%d' % (arg, arg, th))
    for i in range(4):
        a('v_xor_b32 v%d, 0x80000000, v%d' % (O4 + i, O4 + i))
    a('s_lshl_b32 s46, s3, 11')
    a('s_add_u32 s46, s46, %d' % F64)
    a('v_lshlrev_b32 v%d, 4, v%d' % (ad, lane))
    a('v_add_u32 v%d, s46, v%d' % (ad, ad))
    a('ds_write_b128 v%d, %s offset:%d' % (ad, v(O3, 4), T1 - F64))
    a('ds_write_b128 v%d, %s offset:%d' % (ad, v(O4, 4), T1 - F64 + 1024))
    O5 = V.a(4, 4); O6 = V.a(4, 4)
    a('s_lshl_b32 s46, s44, 5')
    a('v_add_u32 v%d, s46, v%d' % (th, lam))
    a('v_cvt_f32_u32 v%d, v%d' % (th, th))
    a('v_mul_f32 v%d, %s, v%d' % (th, f32(1 / 2048.), th))
    a('s_lshl_b32 s46, s45, 3')
    a('v_lshlrev_b32 v%d, 2, v%d' % (arg, hh))
    a('v_add_u32 v%d, s46, v%d' % (arg, arg))
    a('v_cvt_f32_u32 v%d, v%d' % (arg, arg))
    a('v_mul_f32 v%d, v%d, v%d' % (arg, arg, th))
    for i in range(4):
        a('v_cos_f32 v%d, v%d' % (O5 + i, arg)); a('v_sin_f32 v%d, v%d' % (O6 + i, arg))
        if i < 3: a('v_add_f32 v%d, v%d, v%d' % (arg, arg, th))
    for i in range(4):
        a('v_mul_f32 v%d, %s, v%d' % (O5 + i, f32(SC), O5 + i))
        a('v_mul_f32 v%d, %s, v%d' % (O6 + i, f32(SC), O6 + i))
    a('ds_write_b128 v%d, %s offset:%d' % (ad, v(O5, 4), T2 - F64))
    a('ds_write_b128 v%d, %s offset:%d' % (ad, v(O6, 4), T2 - F64 + 1024))
    V.reset(m)

    vD = V.a(); vL16 = V.a(); vWs = V.a(); vF = V.a()
    m = V.mark(); t0 = V.a(); t1 = V.a(); t2 = V.a()
    a('v_and_b32 v%d, 0x39, v%d' % (t0, lane))
    a('v_bfe_u32 v%d, v%d, 1, 1' % (t1, lane))
    a('v_lshl_or_b32 v%d, v%d, 2, v%d' % (t0, t1, t0))
    a('v_bfe_u32 v%d, v%d, 2, 1' % (t1, lane))
    a('v_lshl_or_b32 v%d, v%d, 1, v%d' % (t0, t1, t0))
    a('v_lshlrev_b32 v%d, 2, v%d' % (t0, t0))
    a('s_and_b32 s44, s3, 3'); a('s_lshl_b32 s44, s44, 6')
    a('v_xor_b32 v%d, s44, v%d' % (t0, t0))
    a('s_lshl_b32 s44, s3, 8')
    a('v_add_u32 v%d, s44, v%d' % (vD, t0))
    a('v_lshlrev_b32 v%d, 4, v%d' % (vL16, lane))
    a('v_add_u32 v%d, %d, v%d' % (vF, F64, vL16))
    a('v_lshlrev_b32 v%d, 2, v0' % vWs)
    V.reset(m)
    a('s_cmp_eq_u32 s40, 0')
    a('s_cbranch_scc1 %s_w16' % name)
    a('s_waitcnt vmcnt(8)')
    a('s_branch %s_wd' % name)
    a.L('%s_w16' % name)
    a('s_waitcnt vmcnt(16)')
    a.L('%s_wd' % name)
    for q in range(8):
        for cc in range(4):
            a('ds_write_b32 v%d, v%d offset:%d' % (vD, XL + 4 * q + cc, CD + (4 * (q >> 2) + cc) * 8192 + (q & 3) * 2048))
    a('s_waitcnt lgkmcnt(0)')
    a('s_barrier')
    free_lo = XL
    TRp = free_lo; TIp = free_lo + 16
    AD = V.a(4)
    m1 = V.mark()
    t0 = V.a(); t1 = V.a(); t2 = V.a()
    a('v_bfe_u32 v%d, v%d, 2, 2' % (t0, lane))
    a('v_lshl_add_u32 v%d, v%d, 2, v%d' % (t1, hh, t0))
    a('v_lshlrev_b32 v%d, 8, v%d' % (t1, t1))
    a('v_lshl_add_u32 v%d, v%d, 6, v%d' % (t1, t0, t1))
    a('v_bfe_u32 v%d, v%d, 4, 1' % (t0, lane))
    a('v_lshl_add_u32 v%d, v%d, 5, v%d' % (t1, t0, t1))
    a('v_and_b32 v%d, 3, v%d' % (t0, lane))
    a('v_lshl_add_u32 v%d, v%d, 3, v%d' % (t1, t0, t1))
    a('s_lshl_b32 s44, s3, 13')
    a('v_add_u32 v%d, s44, v%d' % (AD, t1))
    for mb in range(1, 4):
        a('v_xor_b32 v%d, %d, v%d' % (AD + mb, mb << 6, AD))
    V.reset(m1)
    A = V.a(16, 4)
    P1 = V.a(16, 4); P2 = V.a(16, 4)
    TW = V.a(16, 4)
    tr = V.a(8); ti = V.a(8); x0 = V.a(); x1 = V.a()
    def ld_A(mb):
        b = A + 8 * (mb & 1)
        for q in range(2):
            for jj in range(2):
                a('ds_read_b64_tr_b16 %s, v%d offset:%d' % (v(b + 4 * q + 2 * jj, 2), AD + mb, CD + q * 4096 + jj * 2048))
    ld_A(0)
    for mb in range(4):
        b = A + 8 * (mb & 1)
        for jj in range(2):
            w8 = (mb >> 1) * 4 + 2 * (mb & 1) + jj
            a('ds_read_b128 %s, v%d offset:%d' % (v(TW + 4 * jj, 4), vF, T1 - F64 + w8 * 2048))
            a('ds_read_b128 %s, v%d offset:%d' % (v(TW + 8 + 4 * jj, 4), vF, T1 - F64 + w8 * 2048 + 1024))
        if mb < 3:
            ld_A(mb + 1)
            a('s_waitcnt lgkmcnt(8)')
        else:
            a('s_waitcnt lgkmcnt(4)')
        mfma32(a, P1, b, Fr, '0'); mfma32(a, P2, b, Fi, '0')
        mfma32(a, P1, b + 4, Fr + 4, P1); mfma32(a, P2, b + 4, Fi + 4, P2)
        a('s_waitcnt lgkmcnt(%d)' % (4 if mb < 3 else 0))
        for j in range(4):
            for ii in range(2):
                t = 2 * j + ii; r0 = 4 * j + 2 * ii
                a('v_sub_f32 v%d, v%d, v%d' % (tr + t, P1 + r0, P2 + r0 + 1))
                a('v_add_f32 v%d, v%d, v%d' % (ti + t, P2 + r0, P1 + r0 + 1))
        for t in range(0, 8, 2):
            a('v_mul_f32 v%d, v%d, v%d' % (x0, tr + t, TW + t))
            a('v_mul_f32 v%d, v%d, v%d' % (x1, tr + t + 1, TW + t + 1))
            a('v_fma_f32 v%d, -v%d, v%d, v%d' % (x0, ti + t, TW + 8 + t, x0))
            a('v_fma_f32 v%d, -v%d, v%d, v%d' % (x1, ti + t + 1, TW + 8 + t + 1, x1))
            a('v_cvt_pk_bf16_f32 v%d, v%d, v%d' % (TRp + 4 * mb + t // 2, x0, x1))
            a('v_mul_f32 v%d, v%d, v%d' % (x0, tr + t, TW + 8 + t))
            a('v_mul_f32 v%d, v%d, v%d' % (x1, tr + t + 1, TW + 8 + t + 1))
            a('v_fmac_f32 v%d, v%d, v%d' % (x0, ti + t, TW + t))
            a('v_fmac_f32 v%d, v%d, v%d' % (x1, ti + t + 1, TW + t + 1))
            a('v_cvt_pk_bf16_f32 v%d, v%d, v%d' % (TIp + 4 * mb + t // 2, x0, x1))
    V.reset(m1)
    a('s_barrier')
    m = V.mark(); y0 = V.a(); y1 = V.a()
    a('s_waitcnt vmcnt(0)')
    a('s_mov_b32 s44, 0x05040100'); a('s_mov_b32 s45, 0x07060302')
    for q in range(4):
        for u in range(4):
            a('v_perm_b32 v%d, v%d, v%d, s44' % (y0, WI + 4 * q + u, WR + 4 * q + u))
            a('v_perm_b32 v%d, v%d, v%d, s45' % (y1, WI + 4 * q + u, WR + 4 * q + u))
            a('ds_write_b32 v%d, v%d offset:%d' % (vWs, y0, CD + (2 * u) * 8192 + q * 2048))
            a('ds_write_b32 v%d, v%d offset:%d' % (vWs, y1, CD + (2 * u + 1) * 8192 + q * 2048))
    a('s_cmp_eq_u32 s40, 0')
    a('s_cbranch_scc0 %s_nosp2' % name)
    for q in range(4):
        a('v_perm_b32 v%d, v%d, v%d, s44' % (y0, WI + 4 * q, WR + 4 * q))
        a('v_add_u32 v%d, %d, v%d' % (y1, W0S + q * 2048, vWs))
        a('ds_write_b32 v%d, v%d' % (y1, y0))
        a('v_lshl_or_b32 v%d, v%d, 16, v%d' % (y0, W3 + 2 * q + 1, W3 + 2 * q))
        a('v_add_u32 v%d, %d, v%d' % (y1, W3S + q * 2048, vWs))
        a('ds_write_b32 v%d, v%d' % (y1, y0))
    a.L('%s_nosp2' % name)
    V.reset(m)
    Xr = V.a(32, 4); Xi = V.a(32, 4)
    FB = V.a(16, 4)
    NI = V.a(4, 4)
    m3 = V.mark()
    seq = [(mb, eb) for mb in range(4) for eb in range(2)]
    def ld_F(idx, lb, kb):
        b = FB + 8 * (idx & 1)
        a('ds_read_b128 %s, v%d offset:%d' % (v(b, 4), vF, (lb * 4 + kb) * 1024))
        a('ds_read_b128 %s, v%d offset:%d' % (v(b + 4, 4), vF, 8192 + (lb * 4 + kb) * 1024))
    a('s_waitcnt lgkmcnt(0)')
    ld_F(0, seq[0][1], seq[0][0])
    for idx, (mb, eb) in enumerate(seq):
        b = FB + 8 * (idx & 1)
        if eb == 0:
            for k in range(4): a('v_xor_b32 v%d, 0x80008000, v%d' % (NI + k, TIp + 4 * mb + k))
        if idx + 1 < len(seq):
            ld_F(idx + 1, seq[idx + 1][1], seq[idx + 1][0]); a('s_waitcnt lgkmcnt(2)')
        else: a('s_waitcnt lgkmcnt(0)')
        xr = Xr + 16 * eb; xi = Xi + 16 * eb
        mfma32(a, xr, b, TRp + 4 * mb, '0' if mb == 0 else xr)
        mfma32(a, xi, b + 4, TRp + 4 * mb, '0' if mb == 0 else xi)
        mfma32(a, xr, b + 4, NI, xr)
        mfma32(a, xi, b, TIp + 4 * mb, xi)
    a('s_barrier')
    YR = free_lo; YI = free_lo + 16
    vW = V.a(); WW = V.a(16); wr = V.a(); wi = V.a(); y = V.a(4)
    a('v_lshlrev_b32 v%d, 2, v%d' % (vW, lam))
    a('v_lshl_add_u32 v%d, v%d, 9, v%d' % (vW, hh, vW))
    sp = V.a()
    a('s_cmp_eq_u32 s40, 0'); a('s_cselect_b32 s44, 1, 0')
    a('s_cmp_eq_u32 s3, 0'); a('s_cselect_b32 s45, 1, 0')
    a('s_and_b32 s44, s44, s45')
    a('s_cmp_eq_u32 s44, 1')
    a('s_cbranch_scc1 %s_special' % name)
    a('s_lshl_b32 s44, s3, 13')
    a('v_add_u32 v%d, s44, v%d' % (vW, vW))
    for eb in range(2):
        for j in range(4):
            for i in range(4):
                a('ds_read_b32 v%d, v%d offset:%d' % (WW + 4 * (j & 3) + i, vW, CD + 4096 * eb + 1024 * j + 128 * i))
        for j in range(4):
            a('s_waitcnt lgkmcnt(%d)' % (12 - 4 * j))
            for ip in range(2):
                for k in range(2):
                    i = 2 * ip + k; r = 16 * eb + 4 * j + i; w = WW + 4 * j + i
                    a('v_lshlrev_b32 v%d, 16, v%d' % (wr, w))
                    a('v_and_b32 v%d, 0xffff0000, v%d' % (wi, w))
                    a('v_mul_f32 v%d, v%d, v%d' % (y + k, Xr + r, wr))
                    a('v_mul_f32 v%d, v%d, v%d' % (y + 2 + k, Xr + r, wi))
                    a('v_fma_f32 v%d, -v%d, v%d, v%d' % (y + k, Xi + r, wi, y + k))
                    a('v_fmac_f32 v%d, v%d, v%d' % (y + 2 + k, Xi + r, wr))
                kq = 2 * eb + (j >> 1); slot = 2 * (j & 1) + ip
                a('v_cvt_pk_bf16_f32 v%d, v%d, v%d' % (YR + 4 * kq + slot, y, y + 1))
                a('v_cvt_pk_bf16_f32 v%d, v%d, v%d' % (YI + 4 * kq + slot, y + 2, y + 3))
    a('s_branch %s_filtered' % name)
    a.L('%s_special' % name)
    mS = V.mark()
    vZ = V.a(); vZr = V.a(); vWf = V.a(); vWr = V.a()
    zz = V.a(2, 2); zr = V.a(2, 2); Ar = V.a(); Ai = V.a(); Br = V.a(); Bi = V.a(); Pr = V.a(); Pi = V.a(); Qr = V.a(); Qi = V.a()
    w4 = V.a(4); tt = V.a(2)
    a('v_lshl_add_u32 v%d, v%d, 7, v%d' % (tt, hh, lam))
    a('v_lshlrev_b32 v%d, 3, v%d' % (vZ, tt))
    a('v_add_u32 v%d, %d, v%d' % (vZ, ZS, vZ))
    for eb in range(2):
        for j in range(4):
            for i in range(4):
                r = 16 * eb + 4 * j + i
                a('v_mov_b32 v%d, v%d' % (zz, Xr + r)); a('v_mov_b32 v%d, v%d' % (zz + 1, Xi + r))
                a('ds_write_b64 v%d, %s offset:%d' % (vZ, v(zz, 2), 256 * (32 * eb + 8 * j + i)))
    a('s_mov_b64 s[46:47], exec')
    a('s_mov_b64 exec, 1')
    a('v_mov_b32 v%d, v%d' % (zz, Xr)); a('v_mov_b32 v%d, v%d' % (zz + 1, Xi))
    a('v_mov_b32 v%d, %d' % (tt + 1, ZS + 2048 * 8))
    a('ds_write_b64 v%d, %s' % (tt + 1, v(zz, 2)))
    a('v_mov_b32 v%d, %d' % (tt + 1, W0S))
    a('ds_read_b32 v%d, v%d' % (w4, tt + 1))
    a('v_mov_b32 v%d, %d' % (tt + 1, W3S))
    a('ds_read_b32 v%d, v%d' % (w4 + 1, tt + 1))
    a('s_waitcnt lgkmcnt(0)')
    a('v_mov_b32 v%d, %d' % (tt + 1, W0S + 2048 * 4))
    a('ds_write_b32 v%d, v%d' % (tt + 1, w4))
    a('v_mov_b32 v%d, %d' % (tt + 1, W3S + 2048 * 4))
    a('ds_write_b32 v%d, v%d' % (tt + 1, w4 + 1))
    a('s_mov_b64 exec, s[46:47]')
    a('s_waitcnt lgkmcnt(0)')
    a('v_sub_u32 v%d, 2048, v%d' % (tt + 1, tt))
    a('v_lshlrev_b32 v%d, 3, v%d' % (vZr, tt + 1))
    a('v_add_u32 v%d, %d, v%d' % (vZr, ZS - 256 * 59, vZr))
    a('v_lshlrev_b32 v%d, 2, v%d' % (vWf, tt))
    a('v_add_u32 v%d, %d, v%d' % (vWf, W0S, vWf))
    a('v_lshlrev_b32 v%d, 2, v%d' % (vWr, tt + 1))
    a('v_add_u32 v%d, %d, v%d' % (vWr, W0S - 128 * 59, vWr))
    for eb in range(2):
        for j in range(4):
            for ip in range(2):
                for k in range(2):
                    i = 2 * ip + k; r = 16 * eb + 4 * j + i; E = 32 * eb + 8 * j + i
                    a('ds_read_b64 %s, v%d offset:%d' % (v(zr, 2), vZr, 256 * (59 - E)))
                    a('ds_read_b32 v%d, v%d offset:%d' % (w4, vWf, 128 * E))
                    a('ds_read_b32 v%d, v%d offset:%d' % (w4 + 1, vWr, 128 * (59 - E)))
                    a('ds_read_b32 v%d, v%d offset:%d' % (w4 + 2, vWf, 128 * E + (W3S - W0S)))
                    a('ds_read_b32 v%d, v%d offset:%d' % (w4 + 3, vWr, 128 * (59 - E) + (W3S - W0S)))
                    a('s_waitcnt lgkmcnt(0)')
                    for (dr, di, f, rv) in ((Ar, Ai, w4, w4 + 1), (Br, Bi, w4 + 2, w4 + 3)):
                        a('v_lshlrev_b32 v%d, 16, v%d' % (dr, f)); a('v_lshlrev_b32 v%d, 16, v%d' % (tt, rv))
                        a('v_add_f32 v%d, v%d, v%d' % (dr, dr, tt))
                        a('v_and_b32 v%d, 0xffff0000, v%d' % (di, f)); a('v_and_b32 v%d, 0xffff0000, v%d' % (tt, rv))
                        a('v_sub_f32 v%d, v%d, v%d' % (di, di, tt))
                    a('v_add_f32 v%d, v%d, v%d' % (Pr, Ar, Br)); a('v_add_f32 v%d, v%d, v%d' % (Pi, Ai, Bi))
                    a('v_sub_f32 v%d, v%d, v%d' % (Qr, Ar, Br)); a('v_sub_f32 v%d, v%d, v%d' % (Qi, Ai, Bi))
                    a('v_mul_f32 v%d, v%d, v%d' % (y + k, Xr + r, Pr))
                    a('v_fma_f32 v%d, -v%d, v%d, v%d' % (y + k, Xi + r, Pi, y + k))
                    a('v_fmac_f32 v%d, v%d, v%d' % (y + k, zr, Qr))
                    a('v_fmac_f32 v%d, v%d, v%d' % (y + k, zr + 1, Qi))
                    a('v_mul_f32 v%d, v%d, v%d' % (y + 2 + k, Xr + r, Pi))
                    a('v_fmac_f32 v%d, v%d, v%d' % (y + 2 + k, Xi + r, Pr))
                    a('v_fmac_f32 v%d, v%d, v%d' % (y + 2 + k, zr, Qi))
                    a('v_fma_f32 v%d, -v%d, v%d, v%d' % (y + 2 + k, zr + 1, Qr, y + 2 + k))
                    a('v_mul_f32 v%d, 0x3e000000, v%d' % (y + k, y + k))
                    a('v_mul_f32 v%d, 0x3e000000, v%d' % (y + 2 + k, y + 2 + k))
                kq = 2 * eb + (j >> 1); slot = 2 * (j & 1) + ip
                a('v_cvt_pk_bf16_f32 v%d, v%d, v%d' % (YR + 4 * kq + slot, y, y + 1))
                a('v_cvt_pk_bf16_f32 v%d, v%d, v%d' % (YI + 4 * kq + slot, y + 2, y + 3))
    V.reset(mS)
    a.L('%s_filtered' % name)
    a('s_waitcnt lgkmcnt(0)')
    a('s_barrier')
    Ur = Xr; Ui = Xi
    seq = [(kq, bb) for kq in range(4) for bb in range(2)]
    ld_F(0, seq[0][1], seq[0][0])
    for idx, (kq, bb) in enumerate(seq):
        b = FB + 8 * (idx & 1)
        if bb == 0:
            for k in range(4): a('v_xor_b32 v%d, 0x80008000, v%d' % (NI + k, YR + 4 * kq + k))
        if idx + 1 < len(seq):
            ld_F(idx + 1, seq[idx + 1][1], seq[idx + 1][0]); a('s_waitcnt lgkmcnt(2)')
        else: a('s_waitcnt lgkmcnt(0)')
        ur = Ur + 16 * bb; ui = Ui + 16 * bb
        mfma32(a, ur, YR + 4 * kq, b, '0' if kq == 0 else ur)
        mfma32(a, ui, YI + 4 * kq, b, '0' if kq == 0 else ui)
        mfma32(a, ur, YI + 4 * kq, b + 4, ur)
        mfma32(a, ui, NI, b + 4, ui)
    V.reset(m3)
    vO = V.a(); TW = V.a(8, 4); x0 = V.a(); x1 = V.a()
    UR = free_lo; UI = free_lo + 8; NU = free_lo + 16
    Yr = V.a(16, 4); Yi = V.a(16, 4); ob = V.a(4)
    a('s_lshr_b32 s44, s3, 2'); a('s_lshl_b32 s44, s44, 15')
    a('s_and_b32 s45, s3, 3'); a('s_lshl_b32 s45, s45, 2'); a('s_add_u32 s44, s44, s45')
    a('v_lshlrev_b32 v%d, 4, v%d' % (vO, lam))
    a('v_lshl_add_u32 v%d, v%d, 12, v%d' % (vO, hh, vO))
    a('v_add_u32 v%d, s44, v%d' % (vO, vO))
    for bb in range(2):
        for j in range(4):
            a('ds_read_b128 %s, v%d offset:%d' % (v(TW, 4), vF, T2 - F64 + (bb * 4 + j) * 2048))
            a('ds_read_b128 %s, v%d offset:%d' % (v(TW + 4, 4), vF, T2 - F64 + (bb * 4 + j) * 2048 + 1024))
            a('s_waitcnt lgkmcnt(0)')
            for ip in range(2):
                r = 16 * bb + 4 * j + 2 * ip; t = 2 * ip
                q2 = j >> 1; slot = 2 * (j & 1) + ip
                a('v_mul_f32 v%d, v%d, v%d' % (x0, Ur + r, TW + t))
                a('v_mul_f32 v%d, v%d, v%d' % (x1, Ur + r + 1, TW + t + 1))
                a('v_fma_f32 v%d, -v%d, v%d, v%d' % (x0, Ui + r, TW + 4 + t, x0))
                a('v_fma_f32 v%d, -v%d, v%d, v%d' % (x1, Ui + r + 1, TW + 4 + t + 1, x1))
                a('v_cvt_pk_bf16_f32 v%d, v%d, v%d' % (UR + 4 * q2 + slot, x0, x1))
                a('v_mul_f32 v%d, v%d, v%d' % (x0, Ur + r, TW + 4 + t))
                a('v_mul_f32 v%d, v%d, v%d' % (x1, Ur + r + 1, TW + 4 + t + 1))
                a('v_fmac_f32 v%d, v%d, v%d' % (x0, Ui + r, TW + t))
                a('v_fmac_f32 v%d, v%d, v%d' % (x1, Ui + r + 1, TW + t + 1))
                a('v_cvt_pk_bf16_f32 v%d, v%d, v%d' % (UI + 4 * q2 + slot, x0, x1))
        for k in range(8): a('v_xor_b32 v%d, 0x80008000, v%d' % (NU + k, UR + k))
        for q2 in range(2):
            mfma32(a, Yr, Fr + 4 * q2, UR + 4 * q2, '0' if q2 == 0 else Yr)
            mfma32(a, Yi, Fr + 4 * q2, UI + 4 * q2, '0' if q2 == 0 else Yi)
            mfma32(a, Yr, Fi + 4 * q2, UI + 4 * q2, Yr)
            mfma32(a, Yi, Fi + 4 * q2, NU + 4 * q2, Yi)
        for j in range(4):
            for i in range(4):
                a('v_cvt_pk_bf16_f32 v%d, v%d, v%d' % (ob + i, Yr + 4 * j + i, Yi + 4 * j + i))
            for i in range(4):
                a('ds_write_b32 v%d, v%d offset:%d' % (vO, ob + i, CD + bb * 512 + j * 8192 + i * 1024))
    a('s_waitcnt lgkmcnt(0)')
    a('s_barrier')
    OB = Xr
    for q in range(8):
        a('ds_read_b128 %s, v%d offset:%d' % (v(OB + 4 * q, 4), v16, CD + q * 8192))
    a('s_add_u32 s42, s41, %d' % Z_OFF)
    for q in range(8):
        a('s_waitcnt lgkmcnt(%d)' % (7 - q))
        a('s_add_u32 s43, s42, %d' % (q * 8192))
        a('buffer_store_dwordx4 %s, v%d, s[16:19], s43 offen' % (v(OB + 4 * q, 4), v16))
```

```python
from common import *

STG = 16384

def tr_addr(a, V, lane_regs, sw, mode, dst4):
    tq, h4, lane = lane_regs
    m = V.mark()
    rp = V.a(); c = V.a(); R = V.a(); g = V.a(); t = V.a()
    a('v_lshrrev_b32 v%d, 2, v%d' % (rp, tq))
    a('v_and_b32 v%d, 3, v%d' % (c, tq))
    if mode == 'nat':
        a('v_lshl_add_u32 v%d, v%d, 3, v%d' % (R, h4, rp))
        a('v_and_b32 v%d, 2, v%d' % (g, rp))
        a('v_and_b32 v%d, 1, v%d' % (t, h4))
        a('v_lshl_add_u32 v%d, v%d, 2, v%d' % (g, t, g))
    else:
        a('v_lshl_add_u32 v%d, v%d, 2, v%d' % (R, h4, rp))
        a('v_and_b32 v%d, 6, v%d' % (g, R))
    a('v_lshrrev_b32 v%d, 1, v%d' % (t, c))
    a('v_xor_b32 v%d, v%d, v%d' % (t, t, g))
    a('v_lshlrev_b32 v%d, 4, v%d' % (t, t))
    a('v_lshl_add_u32 v%d, v%d, 7, v%d' % (t, R, t))
    a('v_and_b32 v%d, 1, v%d' % (c, c))
    a('v_lshl_add_u32 v%d, v%d, 3, v%d' % (t, c, t))
    a('v_add_u32 v%d, s%d, v%d' % (dst4, sw, t))
    for cb in range(1, 4):
        a('v_xor_b32 v%d, %d, v%d' % (dst4 + cb, cb << 5, dst4))
    V.reset(m)

def dma_voff(a, V, lane, mode, pitch, dstA, dstB):
    m = V.mark()
    row = V.a(); ch = V.a(); g = V.a()
    a('v_lshrrev_b32 v%d, 3, v%d' % (row, lane))
    a('v_and_b32 v%d, 7, v%d' % (ch, lane))
    if mode == 'nat':
        a('v_and_b32 v%d, 2, v%d' % (g, row))
    else:
        a('v_and_b32 v%d, 6, v%d' % (g, row))
    a('v_xor_b32 v%d, v%d, v%d' % (ch, ch, g))
    a('v_mul_u32_u24 v%d, %d, v%d' % (row, pitch, row))
    a('v_lshl_add_u32 v%d, v%d, 4, v%d' % (dstA, ch, row))
    if mode == 'nat':
        a('v_xor_b32 v%d, 4, v%d' % (ch, ch))
        a('v_lshl_add_u32 v%d, v%d, 4, v%d' % (dstB, ch, row))
    V.reset(m)

def issue_w_step(a, srdw, vA, vB, s_off, s_m0, pitch, slot, s_tmp):
    for jj in range(4):
        a('s_add_u32 m0, s%d, %d' % (s_m0, slot * 4096 + jj * 1024))
        a('buffer_load_dwordx4 v%d, s[%d:%d], s%d offen lds' % (vB if jj & 1 else vA, srdw, srdw + 3, s_off))
        a('s_add_u32 s%d, s%d, %d' % (s_off, s_off, 8 * pitch))

def read_w_step(a, addr4, slot, rd1off, W):
    for cb in range(4):
        a('ds_read_b64_tr_b16 %s, v%d offset:%d' % (v(W + 4 * cb, 2), addr4 + cb, slot * 4096))
        a('ds_read_b64_tr_b16 %s, v%d offset:%d' % (v(W + 4 * cb + 2, 2), addr4 + cb, slot * 4096 + rd1off))
```

```python
from common import *

XP = 1344
XI = 0
HI = 8 * XP
OP = 1296
OI = 2 * 8 * XP
DUM = OI + 8 * OP
K1_LDS = DUM + 512

def gen_p1(a, name='p1_kernel'):
    V = RA('v', 1, 256)
    kernel_header(a, name)
    a('s_cmp_ge_u32 s2, 256')
    a('s_cbranch_scc1 %s_end' % name)
    a('s_load_dwordx2 s[4:5], s[0:1], 0')
    a('s_load_dwordx2 s[6:7], s[0:1], 64')
    a('s_load_dwordx2 s[20:21], s[0:1], 88')
    lane = V.a(); tq = V.a(); h4 = V.a()
    a('v_and_b32 v%d, 63, v0' % lane)
    a('v_lshrrev_b32 v%d, 6, v0' % tq)
    a('v_readfirstlane_b32 s3, v%d' % tq)
    a('v_and_b32 v%d, 15, v0' % tq)
    a('v_bfe_u32 v%d, v0, 4, 2' % h4)
    a('s_lshl_b32 s22, s2, 3')
    a('s_add_u32 s23, s22, s3')
    a('s_mul_i32 s24, s23, 1280')
    voff4 = V.a()
    a('v_lshlrev_b32 v%d, 2, v%d' % (voff4, lane))
    a('s_waitcnt lgkmcnt(0)')
    srd(a, 8, 4, S * D * 2)
    srd(a, 12, 6, D * 2)
    srd(a, 16, 20, WS_END)
    X = V.a(5); G = V.a(5)
    for j in range(5):
        a('buffer_load_dword v%d, v%d, s[8:11], s24 offen offset:%d' % (X + j, voff4, 256 * j))
    for j in range(5):
        a('buffer_load_dword v%d, v%d, s[12:15], 0 offen offset:%d' % (G + j, voff4, 256 * j))

    tf = V.a(); hf = V.a()
    a('v_cvt_f32_u32 v%d, v%d' % (tf, tq))
    a('v_cvt_f32_u32 v%d, v%d' % (hf, h4))
    B1r = V.a(4, 4); B1i = V.a(4, 4)
    TWr = V.a(8); TWi = V.a(8)
    Fr = V.a(8, 4); Fi = V.a(8, 4)
    m = V.mark()
    th = V.a(); arg = V.a(); mA = V.a(); mB = V.a(); c0 = V.a(); c1 = V.a(); s0 = V.a(); s1 = V.a()
    a('v_cmp_ge_u32 vcc, 10, v%d' % tq)
    a('v_cndmask_b32 v%d, 0, 1.0, vcc' % mA)
    a('v_mov_b32 v%d, v%d' % (mB, mA))
    a('v_cmp_ge_u32 vcc, 2, v%d' % h4)
    a('v_cndmask_b32 v%d, 0, v%d, vcc' % (mA, mA))
    a('v_cmp_ge_u32 vcc, 1, v%d' % h4)
    a('v_cndmask_b32 v%d, 0, v%d, vcc' % (mB, mB))
    a('v_mul_f32 v%d, %s, v%d' % (th, f32(1 / 20.), tf))
    a('v_mul_f32 v%d, %s, v%d' % (arg, f32(8.0), hf))
    a('v_mul_f32 v%d, v%d, v%d' % (arg, arg, th))
    for jp in range(4):
        mk = mA if jp < 2 else mB
        a('v_cos_f32 v%d, v%d' % (c0, arg)); a('v_sin_f32 v%d, v%d' % (s0, arg))
        a('v_add_f32 v%d, v%d, v%d' % (arg, arg, th))
        a('v_cos_f32 v%d, v%d' % (c1, arg)); a('v_sin_f32 v%d, v%d' % (s1, arg))
        a('v_add_f32 v%d, v%d, v%d' % (arg, arg, th))
        a('v_mul_f32 v%d, v%d, v%d' % (c0, c0, mk)); a('v_mul_f32 v%d, v%d, v%d' % (c1, c1, mk))
        a('v_mul_f32_e64 v%d, -v%d, v%d' % (s0, s0, mk)); a('v_mul_f32_e64 v%d, -v%d, v%d' % (s1, s1, mk))
        a('v_cvt_pk_bf16_f32 v%d, v%d, v%d' % (B1r + jp, c0, c1))
        a('v_cvt_pk_bf16_f32 v%d, v%d, v%d' % (B1i + jp, s0, s1))
    a('v_mul_f32 v%d, %s, v%d' % (th, f32(1 / 640.), tf))
    for pb in range(2):
        a('v_fmaak_f32 v%d, 4.0, v%d, %s' % (arg, hf, f32(16.0 * pb)))
        a('v_mul_f32 v%d, v%d, v%d' % (arg, arg, th))
        for i in range(4):
            a('v_cos_f32 v%d, v%d' % (TWr + 4 * pb + i, arg))
            a('v_sin_f32 v%d, v%d' % (TWi + 4 * pb + i, arg))
            if i < 3: a('v_add_f32 v%d, v%d, v%d' % (arg, arg, th))
    for i in range(8):
        a('v_xor_b32 v%d, 0x80000000, v%d' % (TWi + i, TWi + i))
    a('v_mul_f32 v%d, %s, v%d' % (th, f32(1 / 32.), tf))
    for half in range(2):
        a('v_fmaak_f32 v%d, 4.0, v%d, %s' % (arg, hf, f32(16.0 * half)))
        a('v_mul_f32 v%d, v%d, v%d' % (arg, arg, th))
        for jp in range(2):
            a('v_cos_f32 v%d, v%d' % (c0, arg)); a('v_sin_f32 v%d, v%d' % (s0, arg))
            a('v_add_f32 v%d, v%d, v%d' % (arg, arg, th))
            a('v_cos_f32 v%d, v%d' % (c1, arg)); a('v_sin_f32 v%d, v%d' % (s1, arg))
            a('v_add_f32 v%d, v%d, v%d' % (arg, arg, th))
            a('v_cvt_pk_bf16_f32 v%d, v%d, v%d' % (Fr + 2 * half + jp, c0, c1))
            a('v_cvt_pk_bf16_f32 v%d, -v%d, -v%d' % (Fi + 2 * half + jp, s0, s1))
    for k in range(4):
        a('v_xor_b32 v%d, 0x80000000, v%d' % (Fr + 4 + k, Fr + k))
        a('v_xor_b32 v%d, 0x80000000, v%d' % (Fi + 4 + k, Fi + k))
    V.reset(m)

    vXW = V.a(); vT0 = V.a(); vT1 = V.a(); vHR = V.a(); vO0 = V.a(); vO1 = V.a()
    m = V.mark()
    t0 = V.a(); t1 = V.a(); t2 = V.a()
    a('s_mul_i32 s25, s3, %d' % XP)
    a('v_add_u32 v%d, s25, v%d' % (vXW, voff4))
    a('v_lshrrev_b32 v%d, 2, v%d' % (t0, tq))
    a('v_and_b32 v%d, 3, v%d' % (t1, tq))
    a('v_lshl_add_u32 v%d, v%d, 3, v%d' % (t2, h4, t0))
    a('v_cmp_eq_u32 vcc, 3, v%d' % h4)
    a('v_cndmask_b32 v%d, v%d, v%d, vcc' % (t2, t2, t0))
    a('v_lshlrev_b32 v%d, 6, v%d' % (t2, t2))
    a('v_lshl_add_u32 v%d, v%d, 3, v%d' % (t2, t1, t2))
    a('v_add_u32 v%d, s25, v%d' % (vT0, t2))
    a('v_lshl_add_u32 v%d, v%d, 3, v%d' % (t2, h4, t0))
    a('v_add_u32 v%d, 4, v%d' % (t2, t2))
    a('v_cmp_le_u32 vcc, 2, v%d' % h4)
    a('v_cndmask_b32 v%d, v%d, v%d, vcc' % (t2, t2, t0))
    a('v_lshlrev_b32 v%d, 6, v%d' % (t2, t2))
    a('v_lshl_add_u32 v%d, v%d, 3, v%d' % (t2, t1, t2))
    a('v_add_u32 v%d, s25, v%d' % (vT1, t2))
    a('v_mul_u32_u24 v%d, %d, v%d' % (t2, XP, t0))
    a('v_lshl_add_u32 v%d, v%d, 5, v%d' % (t2, h4, t2))
    a('v_lshl_add_u32 v%d, v%d, 3, v%d' % (t2, t1, t2))
    a('s_lshl_b32 s26, s3, 7')
    a('v_add_u32 v%d, s26, v%d' % (vHR, t2))
    a('v_mul_u32_u24 v%d, 80, v%d' % (t2, h4))
    a('v_add_u32 v%d, v%d, v%d' % (t2, t2, tq))
    a('s_mul_i32 s26, s3, %d' % OP)
    a('s_add_u32 s26, s26, %d' % OI)
    a('v_lshlrev_b32 v%d, 2, v%d' % (t0, t2))
    a('v_add_u32 v%d, s26, v%d' % (vO0, t0))
    a('v_mov_b32 v%d, %d' % (t1, DUM))
    a('v_cmp_lt_u32 vcc, 10, v%d' % tq)
    a('v_cndmask_b32 v%d, v%d, v%d, vcc' % (vO0, vO0, t1))
    a('s_add_u32 s26, s26, %d' % (4 * 320 - 240))
    a('v_sub_u32 v%d, s26, v%d' % (vO1, t0))
    a('v_cmp_le_u32 vcc, 10, v%d' % tq)
    a('v_cndmask_b32 v%d, v%d, v%d, vcc' % (vO1, vO1, t1))
    a('v_cmp_eq_u32 vcc, 0, v%d' % tq)
    a('v_cndmask_b32 v%d, v%d, v%d, vcc' % (vO1, vO1, t1))
    V.reset(m)

    cid = V.a(); OUT = V.a(4, 4)
    m = V.mark()
    fr = V.a(); kb = V.a(); dt = V.a(); dd = V.a(); jj = V.a(); arg = V.a(); c0 = V.a(); s0 = V.a(); dn = V.a()
    a('s_mul_i32 s26, s2, 200')
    a('v_add_u32 v%d, s26, v0' % cid)
    a('v_lshrrev_b32 v%d, 6, v%d' % (fr, cid))
    a('v_mul_u32_u24 v%d, 205, v%d' % (kb, fr))
    a('v_lshrrev_b32 v%d, 13, v%d' % (kb, kb))
    a('v_mul_u32_u24 v%d, 40, v%d' % (dt, kb))
    a('v_sub_u32 v%d, v%d, v%d' % (dt, fr, dt))
    a('v_and_b32 v%d, 15, v%d' % (dd, cid))
    a('v_lshl_add_u32 v%d, v%d, 4, v%d' % (dd, dt, dd))
    a('v_bfe_u32 v%d, v%d, 4, 2' % (jj, cid))
    a('v_lshlrev_b32 v%d, 2, v%d' % (jj, jj))
    a('v_lshl_add_u32 v%d, v%d, 4, v%d' % (jj, kb, jj))
    a('v_cvt_f32_u32 v%d, v%d' % (dn, dd))
    a('v_mul_f32 v%d, %s, v%d' % (dn, f32(1 / 640.), dn))
    for e in range(4):
        a('v_add_u32 v%d, %d, v%d' % (arg, e, jj))
        a('v_cvt_f32_u32 v%d, v%d' % (arg, arg))
        a('v_mul_f32 v%d, v%d, v%d' % (arg, arg, dn))
        a('v_fract_f32 v%d, v%d' % (arg, arg))
        a('v_cos_f32 v%d, v%d' % (c0, arg))
        a('v_sin_f32 v%d, v%d' % (s0, arg))
        a('v_xor_b32 v%d, 0x80000000, v%d' % (s0, s0))
        if e == 0:
            a('v_and_b32 v%d, 1, v%d' % (arg, dd))
            a('v_lshlrev_b32 v%d, 31, v%d' % (arg, arg))
            a('v_or_b32 v%d, 1.0, v%d' % (arg, arg))
            a('v_cmp_eq_u32 vcc, 0, v%d' % jj)
            a('v_cndmask_b32 v%d, v%d, v%d, vcc' % (s0, s0, arg))
        a('v_cvt_pk_bf16_f32 v%d, v%d, v%d' % (OUT + e, c0, s0))
    a('v_lshlrev_b32 v%d, 4, v%d' % (cid, cid))
    V.reset(m)

    xf = V.a(10); sm = V.a(); sp = V.a(); t0 = V.a(); t1 = V.a(); t2 = V.a(); t3 = V.a()
    a('s_waitcnt vmcnt(5)')
    for j in range(5):
        a('ds_write_b32 v%d, v%d offset:%d' % (vXW, X + j, XI + 256 * j))
        a('v_lshlrev_b32 v%d, 16, v%d' % (xf + 2 * j, X + j))
        a('v_and_b32 v%d, 0xffff0000, v%d' % (xf + 2 * j + 1, X + j))
    a('v_add_f32 v%d, v%d, v%d' % (sm, xf, xf + 1))
    for j in range(2, 10):
        a('v_add_f32 v%d, v%d, v%d' % (sm, sm, xf + j))
    a('s_waitcnt vmcnt(0)')
    for j in range(5):
        a('v_lshlrev_b32 v%d, 16, v%d' % (t0, G + j))
        a('v_and_b32 v%d, 0xffff0000, v%d' % (t1, G + j))
        a('v_mul_f32 v%d, v%d, v%d' % (t0, t0, xf + 2 * j))
        a('v_mul_f32 v%d, v%d, v%d' % (t1, t1, xf + 2 * j + 1))
        a('v_cvt_pk_bf16_f32 v%d, v%d, v%d' % (t2, t0, t1))
        a('v_lshlrev_b32 v%d, 16, v%d' % (t0, t2))
        a('v_and_b32 v%d, 0xffff0000, v%d' % (t1, t2))
        if j == 0: a('v_add_f32 v%d, v%d, v%d' % (sp, t0, t1))
        else:
            a('v_add_f32 v%d, v%d, v%d' % (sp, sp, t0))
            a('v_add_f32 v%d, v%d, v%d' % (sp, sp, t1))
    wave_sum(a, [sm, sp])
    a('v_readlane_b32 s26, v%d, 63' % sm)
    a('v_readlane_b32 s27, v%d, 63' % sp)
    a('v_mov_b32 v%d, %s' % (t0, f32(1 / 640.)))
    a('v_mul_f32 v%d, s26, v%d' % (sm, t0))
    for j in range(10):
        a('v_sub_f32 v%d, v%d, v%d' % (t1, xf + j, sm))
        if j == 0: a('v_mul_f32 v%d, v%d, v%d' % (t2, t1, t1))
        else: a('v_fmac_f32 v%d, v%d, v%d' % (t2, t1, t1))
    wave_sum(a, [t2])
    a('v_readlane_b32 s26, v%d, 63' % t2)
    a('v_mul_f32 v%d, s26, v%d' % (t2, t0))
    rbf(a, t2, 'v%d' % t2)
    a('v_add_f32 v%d, %s, v%d' % (t2, f32(1e-5), t2))
    rbf(a, t2, 'v%d' % t2)
    a('v_sqrt_f32 v%d, v%d' % (t2, t2))
    rbf(a, t2, 'v%d' % t2)
    a('v_rcp_f32 v%d, v%d' % (t2, t2))
    rbf(a, sm, 'v%d' % sm)
    for j in range(5):
        a('v_sub_f32 v%d, v%d, v%d' % (t0, xf + 2 * j, sm))
        a('v_sub_f32 v%d, v%d, v%d' % (t1, xf + 2 * j + 1, sm))
        a('v_cvt_pk_bf16_f32 v%d, v%d, v%d' % (t3, t0, t1))
        a('v_lshlrev_b32 v%d, 16, v%d' % (t0, t3))
        a('v_and_b32 v%d, 0xffff0000, v%d' % (t1, t3))
        a('v_mul_f32 v%d, v%d, v%d' % (t0, t0, t2))
        a('v_mul_f32 v%d, v%d, v%d' % (t1, t1, t2))
        a('v_cvt_pk_bf16_f32 v%d, v%d, v%d' % (t3, t0, t1))
        a('ds_write_b32 v%d, v%d offset:%d' % (vXW, t3, HI + 256 * j))
    gp = V.a(2, 2)
    a('v_mov_b32 v%d, s27' % t0)
    rbf(a, t0, 'v%d' % t0)
    a('v_mul_f32 v%d, %s, v%d' % (t0, f32(-math.log2(math.e)), t0))
    a('v_exp_f32 v%d, v%d' % (t0, t0))
    a('v_add_f32 v%d, 1.0, v%d' % (t0, t0))
    a('v_rcp_f32 v%d, v%d' % (t0, t0))
    rbf(a, gp, 'v%d' % t0)
    a('v_sub_f32 v%d, 1.0, v%d' % (t0, gp))
    rbf(a, gp + 1, 'v%d' % t0)
    a('s_lshl_b32 s26, s23, 3')
    a('s_add_u32 s26, s26, %d' % G_OFF)
    a('v_mov_b32 v%d, 0' % t0)
    a('s_mov_b64 s[30:31], exec')
    a('s_mov_b64 exec, 1')
    a('buffer_store_dwordx2 %s, v%d, s[16:19], s26 offen' % (v(gp, 2), t0))
    a('s_mov_b64 exec, s[30:31]')

    A0 = V.a(4, 4); A1 = V.a(4, 4)
    Tr = V.a(8, 4); Ti = V.a(8, 4)
    a('s_waitcnt lgkmcnt(0)')
    for pb, A in ((0, A0), (1, A1)):
        a('ds_read_b64_tr_b16 %s, v%d offset:%d' % (v(A, 2), vT0, XI + 32 * pb))
        a('ds_read_b64_tr_b16 %s, v%d offset:%d' % (v(A + 2, 2), vT1, XI + 32 * pb))
    a('s_waitcnt lgkmcnt(0)')
    for pb, A in ((0, A0), (1, A1)):
        a('v_mfma_f32_16x16x32_bf16 %s, %s, %s, 0' % (v(Tr + 4 * pb, 4), v(A, 4), v(B1r, 4)))
        a('v_mfma_f32_16x16x32_bf16 %s, %s, %s, 0' % (v(Ti + 4 * pb, 4), v(A, 4), v(B1i, 4)))
    Pr = V.a(8); Pi = V.a(8)
    for k in range(8):
        a('v_mul_f32 v%d, v%d, v%d' % (Pr + k, Tr + k, TWr + k))
        a('v_mul_f32 v%d, v%d, v%d' % (Pi + k, Tr + k, TWi + k))
    for k in range(8):
        a('v_fma_f32 v%d, -v%d, v%d, v%d' % (Pr + k, Ti + k, TWi + k, Pr + k))
        a('v_fmac_f32 v%d, v%d, v%d' % (Pi + k, Ti + k, TWr + k))
    Br = V.a(4, 4); Bi = V.a(4, 4); Bn = V.a(4, 4)
    for k in range(4):
        a('v_cvt_pk_bf16_f32 v%d, v%d, v%d' % (Br + k, Pr + 2 * k, Pr + 2 * k + 1))
        a('v_cvt_pk_bf16_f32 v%d, v%d, v%d' % (Bi + k, Pi + 2 * k, Pi + 2 * k + 1))
    for k in range(4):
        a('v_xor_b32 v%d, 0x80008000, v%d' % (Bn + k, Bi + k))
    Xr = Tr; Xi = Ti
    for rb in range(2):
        a('v_mfma_f32_16x16x32_bf16 %s, %s, %s, 0' % (v(Xr + 4 * rb, 4), v(Fr + 4 * rb, 4), v(Br, 4)))
        a('v_mfma_f32_16x16x32_bf16 %s, %s, %s, 0' % (v(Xi + 4 * rb, 4), v(Fi + 4 * rb, 4), v(Br, 4)))
    for rb in range(2):
        a('v_mfma_f32_16x16x32_bf16 %s, %s, %s, %s' % (v(Xr + 4 * rb, 4), v(Fi + 4 * rb, 4), v(Bn, 4), v(Xr + 4 * rb, 4)))
        a('v_mfma_f32_16x16x32_bf16 %s, %s, %s, %s' % (v(Xi + 4 * rb, 4), v(Fr + 4 * rb, 4), v(Bi, 4), v(Xi + 4 * rb, 4)))
    a('v_cmp_eq_u32 vcc, 0, v%d' % lane)
    a('v_cndmask_b32 v%d, v%d, v%d, vcc' % (Xi, Xi, Xr + 4))
    for i in range(4):
        a('v_cvt_pk_bf16_f32 v%d, v%d, v%d' % (Pr + i, Xr + i, Xi + i))
        a('v_cvt_pk_bf16_f32 v%d, v%d, -v%d' % (Pr + 4 + i, Xr + 4 + i, Xi + 4 + i))
    for i in range(4):
        a('ds_write_b32 v%d, v%d offset:%d' % (vO0, Pr + i, 80 * i))
        a('ds_write_b32 v%d, v%d offset:%d' % (vO1, Pr + 4 + i, 80 * (3 - i)))
    a('s_waitcnt lgkmcnt(0)')
    a('s_barrier')

    HO = V.a(4, 4); HO2 = V.a(4, 4); hv = V.a()
    a('ds_read_b64_tr_b16 %s, v%d offset:%d' % (v(HO, 2), vHR, HI))
    a('ds_read_b64_tr_b16 %s, v%d offset:%d' % (v(HO + 2, 2), vHR, HI + 4 * XP))
    XO = V.a(4, 4); XO2 = V.a(4, 4); xa = V.a(); xg = V.a()
    a('v_and_b32 v%d, 7, v0' % t0)
    a('v_lshrrev_b32 v%d, 3, v0' % t1)
    a('v_mul_u32_u24 v%d, %d, v%d' % (xa, OP, t0))
    a('v_lshl_add_u32 v%d, v%d, 4, v%d' % (xa, t1, xa))
    a('ds_read_b128 %s, v%d offset:%d' % (v(XO, 4), xa, OI))
    a('v_lshlrev_b32 v%d, 15, v%d' % (xg, t1))
    a('v_lshl_add_u32 v%d, v%d, 4, v%d' % (xg, t0, xg))
    a('v_lshlrev_b32 v%d, 10, v%d' % (hv, h4))
    a('v_lshl_add_u32 v%d, v%d, 4, v%d' % (hv, tq, hv))
    a('s_lshr_b32 s26, s2, 2')
    a('s_mul_i32 s26, s26, 40960')
    a('s_and_b32 s27, s2, 3')
    a('s_lshl_b32 s27, s27, 8')
    a('s_add_u32 s26, s26, s27')
    a('s_add_u32 s26, s26, %d' % H_OFF)
    a('s_lshl_b32 s27, s3, 12')
    a('s_add_u32 s27, s26, s27')
    a('s_lshl_b32 s28, s22, 4')
    a('s_add_u32 s28, s28, %d' % X1_OFF)
    a('s_cmp_lt_u32 s3, 2')
    a('s_cbranch_scc0 %s_skip2' % name)
    a('ds_read_b64_tr_b16 %s, v%d offset:%d' % (v(HO2, 2), vHR, HI + 1024))
    a('ds_read_b64_tr_b16 %s, v%d offset:%d' % (v(HO2 + 2, 2), vHR, HI + 1024 + 4 * XP))
    a('ds_read_b128 %s, v%d offset:%d' % (v(XO2, 4), xa, OI + 1024))
    a('s_add_u32 s29, s27, %d' % (8 * 4096))
    a('s_add_u32 s33, s28, %d' % (64 * 32768))
    a('s_waitcnt lgkmcnt(0)')
    a('buffer_store_dwordx4 %s, v%d, s[16:19], s29 offen' % (v(HO2, 4), hv))
    a('buffer_store_dwordx4 %s, v%d, s[16:19], s33 offen' % (v(XO2, 4), xg))
    a.L('%s_skip2' % name)
    a('s_waitcnt lgkmcnt(0)')
    a('buffer_store_dwordx4 %s, v%d, s[16:19], s27 offen' % (v(HO, 4), hv))
    a('buffer_store_dwordx4 %s, v%d, s[16:19], s28 offen' % (v(XO, 4), xg))
    a('s_cmp_lt_u32 s3, 4')
    a('s_cbranch_scc0 %s_end' % name)
    a('v_cmp_gt_u32 vcc, 200, v0')
    a('s_and_saveexec_b64 s[30:31], vcc')
    a('s_mov_b32 s26, %d' % FI_OFF)
    a('buffer_store_dwordx4 %s, v%d, s[16:19], s26 offen' % (v(OUT, 4), cid))
    a.L('%s_end' % name)
    a('s_endpgm')
    return V.hi
```

```python
from common import *
from gemm import *
import fftjob

NB = 12

def gelu2(a, x0, x1, t0, t1, out):
    c1 = -2.0 * math.sqrt(2.0 / math.pi) * math.log2(math.e)
    c2 = c1 * 0.044715
    for x, t in ((x0, t0), (x1, t1)):
        a('v_mul_f32 v%d, v%d, v%d' % (t, x, x))
    for x, t in ((x0, t0), (x1, t1)):
        a('v_mov_b32 v%d, %s' % (out, f32(c1))) if t == t0 else None
        a('v_fmamk_f32 v%d, v%d, %s, v%d' % (t, t, f32(c2), out))
    for x, t in ((x0, t0), (x1, t1)):
        a('v_mul_f32 v%d, v%d, v%d' % (t, t, x))
    for x, t in ((x0, t0), (x1, t1)):
        a('v_exp_f32 v%d, v%d' % (t, t))
    for x, t in ((x0, t0), (x1, t1)):
        a('v_add_f32 v%d, 1.0, v%d' % (t, t))
    for x, t in ((x0, t0), (x1, t1)):
        a('v_rcp_f32 v%d, v%d' % (t, t))
    for x, t in ((x0, t0), (x1, t1)):
        a('v_mul_f32 v%d, v%d, v%d' % (t, t, x))
    a('v_cvt_pk_bf16_f32 v%d, v%d, v%d' % (out, t0, t1))

def gen_gemm1(a, name, V):
    lane, tq, h4 = V.lane, V.tq, V.h4
    a('s_load_dwordx2 s[4:5], s[0:1], 32')
    a('s_load_dwordx2 s[6:7], s[0:1], 40')
    a('s_waitcnt lgkmcnt(0)')
    srd(a, 8, 4, S * F * 2)
    srd(a, 12, 6, F * 2)
    vA = V.a(); vB = V.a(); TA = V.a(4); vL16 = V.a(); bias = V.a(); vP = V.a(); vR0 = V.a(); vR1 = V.a(); vU = V.a()
    dma_voff(a, V, lane, 'nat', F * 2, vA, vB)
    a('s_lshl_b32 s42, s3, 14')
    a('s_mul_i32 s43, s3, %d' % (256 * F * 2))
    a('s_lshl_b32 s44, s41, 7')
    a('s_add_u32 s43, s43, s44')
    for st in range(4):
        issue_w_step(a, 8, vA, vB, 43, 42, F * 2, st, None)
    m = V.mark(); t0 = V.a(); t1 = V.a(); t2 = V.a()
    a('v_lshrrev_b32 v%d, 8, v0' % t0)
    a('v_lshlrev_b32 v%d, 5, v%d' % (t0, t0))
    a('v_bfe_u32 v%d, v0, 1, 1' % t1)
    a('v_lshl_add_u32 v%d, v%d, 4, v%d' % (t0, t1, t0))
    a('v_bfe_u32 v%d, v0, 6, 2' % t1)
    a('v_lshl_add_u32 v%d, v%d, 2, v%d' % (t0, t1, t0))
    a('v_and_b32 v%d, 1, v0' % t1)
    a('v_lshl_add_u32 v%d, v%d, 1, v%d' % (t0, t1, t0))
    a('v_lshlrev_b32 v%d, 1, v%d' % (t0, t0))
    a('buffer_load_dword v%d, v%d, s[12:15], s44 offen' % (bias, t0))
    a('v_lshrrev_b32 v%d, 8, v0' % t0)
    a('v_bfe_u32 v%d, v0, 1, 1' % t1)
    a('v_lshl_add_u32 v%d, v%d, 1, v%d' % (t0, t0, t1))
    a('v_lshlrev_b32 v%d, 10, v%d' % (t0, t0))
    a('v_bfe_u32 v%d, v0, 2, 6' % t1)
    a('v_lshl_add_u32 v%d, v%d, 4, v%d' % (t0, t1, t0))
    a('v_and_b32 v%d, 1, v0' % t1)
    a('v_lshl_add_u32 v%d, v%d, 3, v%d' % (vR0, t1, t0))
    a('v_add_u32 v%d, 0x10000, v%d' % (vR1, vR0))
    a('v_lshrrev_b32 v%d, 8, v0' % t0)
    a('v_mul_u32_u24 v%d, 40960, v%d' % (t0, t0))
    a('v_and_b32 v%d, 255, v0' % t1)
    a('v_lshl_add_u32 v%d, v%d, 2, v%d' % (vU, t1, t0))
    V.reset(m)
    tr_addr(a, V, (tq, h4, lane), 42, 'nat', TA)
    a('v_lshlrev_b32 v%d, 4, v%d' % (vL16, lane))
    a('v_add_u32 v%d, s42, v%d' % (vP, vL16))
    W = V.a(128, 4); ACC = V.a(32, 4); RB = V.a(4 * NB, 4)
    a('s_mul_i32 s45, s3, %d' % (8 * 40960))
    a('s_mul_i32 s46, s40, 5120')
    a('s_add_u32 s45, s45, s46')
    a('s_add_u32 s45, s45, %d' % H_OFF)
    order = [(dt, st) for dt in range(5) for st in range(8)]
    def issue_h(n):
        dt, st = order[n]
        a('s_add_u32 s47, s45, %d' % (st * 40960 + dt * 1024))
        a('buffer_load_dwordx4 %s, v%d, s[16:19], s47 offen' % (v(RB + 4 * (n % NB), 4), vL16))
    q = ['w0'] * 4 + ['w1'] * 4 + ['w2'] * 4 + ['w3'] * 4 + ['b']
    def wait_for(tag):
        idx = max(i for i, t in enumerate(q) if t == tag)
        n = len(q) - 1 - idx
        a('s_waitcnt vmcnt(%d)' % min(n, 63))
    nh = 0
    for st in range(8):
        wait_for('w%d' % st)
        read_w_step(a, TA, st % 4, 512, W + 16 * st)
        if st + 4 < 8:
            a('s_waitcnt lgkmcnt(0)')
            issue_w_step(a, 8, vA, vB, 43, 42, F * 2, st % 4, None)
            q += ['w%d' % (st + 4)] * 4
        else:
            for k in range(NB // 4):
                issue_h(nh); q.append('h%d' % nh); nh += 1
    a('s_waitcnt lgkmcnt(0)')
    m = V.mark()
    R = V.a(16, 2); x0 = V.a(); x1 = V.a(); t0 = V.a(); t1 = V.a(); o = V.a(); b0 = V.a(); b1 = V.a()
    a('s_mul_i32 s48, s41, %d' % (2 * 40960))
    a('s_add_u32 s48, s48, s46')
    a('s_add_u32 s48, s48, %d' % U_OFF)
    first = True
    for dt in range(5):
        acc = ACC + 16 * (dt & 1)
        for st in range(8):
            n = dt * 8 + st
            wait_for('h%d' % n)
            for ft in range(4):
                c = '0' if st == 0 else v(acc + 4 * ft, 4)
                a('v_mfma_f32_16x16x32_bf16 %s, %s, %s, %s' % (v(acc + 4 * ft, 4), v(W + 16 * st + 4 * ft, 4), v(RB + 4 * (n % NB), 4), c))
            if nh < 40:
                issue_h(nh); q.append('h%d' % nh); nh += 1
        buf = dt & 1
        for ft in range(4):
            a('ds_write_b128 v%d, %s offset:%d' % (vP, v(acc + 4 * ft, 4), buf * 4096 + ft * 1024))
        a('s_waitcnt lgkmcnt(0)')
        a('s_barrier')
        for wv in range(8):
            a('ds_read_b64 %s, v%d offset:%d' % (v(R + 2 * wv, 2), vR0 if wv < 4 else vR1, (wv & 3) * STG + buf * 4096))
        if first:
            wait_for('b')
            a('v_lshlrev_b32 v%d, 16, v%d' % (b0, bias))
            a('v_and_b32 v%d, 0xffff0000, v%d' % (b1, bias))
            first = False
        a('s_waitcnt lgkmcnt(0)')
        for k in (0, 1):
            a('v_add_f32 v%d, v%d, v%d' % (R + k, R + k, R + 2 + k))
            a('v_add_f32 v%d, v%d, v%d' % (R + 4 + k, R + 4 + k, R + 6 + k))
            a('v_add_f32 v%d, v%d, v%d' % (R + 8 + k, R + 8 + k, R + 10 + k))
            a('v_add_f32 v%d, v%d, v%d' % (R + 12 + k, R + 12 + k, R + 14 + k))
        for k in (0, 1):
            a('v_add_f32 v%d, v%d, v%d' % (R + k, R + k, R + 4 + k))
            a('v_add_f32 v%d, v%d, v%d' % (R + 8 + k, R + 8 + k, R + 12 + k))
        for k in (0, 1):
            a('v_add_f32 v%d, v%d, v%d' % (R + k, R + k, R + 8 + k))
        a('v_cvt_pk_bf16_f32 v%d, v%d, v%d' % (o, R, R + 1))
        a('v_lshlrev_b32 v%d, 16, v%d' % (x0, o))
        a('v_and_b32 v%d, 0xffff0000, v%d' % (x1, o))
        a('v_add_f32 v%d, v%d, v%d' % (x0, x0, b0))
        a('v_add_f32 v%d, v%d, v%d' % (x1, x1, b1))
        a('v_cvt_pk_bf16_f32 v%d, v%d, v%d' % (o, x0, x1))
        a('v_lshlrev_b32 v%d, 16, v%d' % (x0, o))
        a('v_and_b32 v%d, 0xffff0000, v%d' % (x1, o))
        gelu2(a, x0, x1, t0, t1, o)
        a('s_add_u32 s47, s48, %d' % (dt * 1024))
        a('buffer_store_dword v%d, v%d, s[16:19], s47 offen' % (o, vU))
        q.append('st')
    V.reset(m)
    a('s_endpgm')

def gen_p2(a, name='p2_kernel', do_fft=True):
    V = RA('v', 1, 256)
    kernel_header(a, name)
    a('s_cmp_ge_u32 s2, 256')
    a('s_cbranch_scc1 %s_end' % name)
    a('s_load_dwordx2 s[20:21], s[0:1], 88')
    V.lane = V.a(); V.tq = V.a(); V.h4 = V.a()
    a('v_and_b32 v%d, 63, v0' % V.lane)
    a('v_lshrrev_b32 v%d, 6, v0' % V.tq)
    a('v_readfirstlane_b32 s3, v%d' % V.tq)
    a('v_and_b32 v%d, 15, v0' % V.tq)
    a('v_bfe_u32 v%d, v0, 4, 2' % V.h4)
    a('s_and_b32 s34, s2, 7')
    a('s_lshr_b32 s35, s2, 3')
    a('s_lshr_b32 s36, s34, 1')
    a('s_cmp_eq_u32 s36, 3')
    a('s_cselect_b32 s37, 24, 28')
    a('s_waitcnt lgkmcnt(0)')
    srd(a, 16, 20, WS_END)
    a('s_cmp_ge_u32 s35, s37')
    a('s_cbranch_scc1 %s_fft' % name)
    a('s_and_b32 s40, s34, 1')
    a('s_lshl_b32 s40, s40, 2')
    a('s_and_b32 s41, s35, 3')
    a('s_add_u32 s40, s40, s41')
    a('s_mul_i32 s41, s36, 7')
    a('s_lshr_b32 s38, s35, 2')
    a('s_add_u32 s41, s41, s38')
    m = V.mark()
    gen_gemm1(a, name, V)
    hi = V.hi
    V.reset(m)
    a.L('%s_fft' % name)
    a('s_sub_u32 s38, s35, s37')
    a('s_lshl_b32 s39, s34, 2')
    a('s_add_u32 s40, s39, s38')
    a('s_sub_u32 s39, s34, 6')
    a('s_lshl_b32 s39, s39, 3')
    a('s_add_u32 s39, s39, s38')
    a('s_add_u32 s39, s39, 24')
    a('s_cmp_ge_u32 s34, 6')
    a('s_cselect_b32 s40, s39, s40')
    if do_fft:
        fftjob.gen_fft(a, name, V)
    a.L('%s_end' % name)
    a('s_endpgm')
    return V.hi, max(8 * STG, fftjob.FFT_LDS if do_fft else 0)
```

```python
from common import *
from gemm import *

OT = 8 * STG
OTP = 176
K3_LDS = OT + 64 * OTP

def stream_phase(a, V, name, nsteps, W, RB, NB, ACC, vL16, s_base, q, nh, issue, wait_for, vP, epilogue):
    for dt in range(5):
        for st in range(nsteps):
            n = dt * nsteps + st
            wait_for('h%d' % n)
            for t in range(4):
                c = '0' if st == 0 else v(ACC + 4 * t, 4)
                a('v_mfma_f32_16x16x32_bf16 %s, %s, %s, %s' % (v(ACC + 4 * t, 4), v(RB + 4 * (n % NB), 4), v(W + 16 * st + 4 * t, 4), c))
            if nh[0] < 5 * nsteps:
                issue(nh[0]); q.append('h%d' % nh[0]); nh[0] += 1
        buf = dt & 1
        for t in range(4):
            a('ds_write_b128 v%d, %s offset:%d' % (vP, v(ACC + 4 * t, 4), buf * 4096 + t * 1024))
        a('s_waitcnt lgkmcnt(0)')
        a('s_barrier')
        epilogue(dt)

def gen_p3(a, name='p3_kernel'):
    V = RA('v', 1, 256)
    kernel_header(a, name)
    a('s_cmp_ge_u32 s2, 256')
    a('s_cbranch_scc1 %s_end' % name)
    a('s_load_dwordx2 s[20:21], s[0:1], 88')
    a('s_load_dwordx2 s[4:5], s[0:1], 48')
    a('s_load_dwordx2 s[6:7], s[0:1], 56')
    a('s_load_dwordx2 s[22:23], s[0:1], 72')
    lane = V.a(); tq = V.a(); h4 = V.a()
    a('v_and_b32 v%d, 63, v0' % lane)
    a('v_lshrrev_b32 v%d, 6, v0' % tq)
    a('v_readfirstlane_b32 s3, v%d' % tq)
    a('v_and_b32 v%d, 15, v0' % tq)
    a('v_bfe_u32 v%d, v0, 4, 2' % h4)
    a('s_and_b32 s34, s2, 7'); a('s_lshr_b32 s35, s2, 3')
    a('s_lshr_b32 s41, s34, 1'); a('s_lshl_b32 s41, s41, 3'); a('s_lshr_b32 s36, s35, 2'); a('s_add_u32 s41, s41, s36')
    a('s_and_b32 s40, s34, 1'); a('s_lshl_b32 s40, s40, 2'); a('s_and_b32 s36, s35, 3'); a('s_add_u32 s40, s40, s36')
    a('s_waitcnt lgkmcnt(0)')
    srd(a, 16, 20, WS_END)
    srd(a, 8, 4, F * S * 2)
    srd(a, 12, 6, S * 2)
    srd(a, 24, 22, S * D * 2)
    vL16 = V.a(); vP = V.a(); vR0 = V.a(); vR1 = V.a(); vOT = V.a(); gg = V.a(2, 2); b2 = V.a()
    a('s_lshl_b32 s42, s3, 14')
    a('v_lshlrev_b32 v%d, 4, v%d' % (vL16, lane))
    a('v_add_u32 v%d, s42, v%d' % (vP, vL16))
    a('v_lshlrev_b32 v%d, 3, v0' % vR0)
    a('v_add_u32 v%d, 0x10000, v%d' % (vR1, vR0))
    m = V.mark(); t0 = V.a(); t1 = V.a(); t2 = V.a()
    a('v_lshrrev_b32 v%d, 7, v0' % t0)
    a('v_bfe_u32 v%d, v0, 1, 4' % t1)
    a('v_lshl_add_u32 v%d, v%d, 4, v%d' % (t0, t0, t1))
    a('s_lshl_b32 s43, s41, 6')
    a('v_add_u32 v%d, s43, v%d' % (t2, t0))
    a('v_lshlrev_b32 v%d, 3, v%d' % (t1, t2))
    a('s_mov_b32 s44, %d' % G_OFF)
    a('buffer_load_dwordx2 %s, v%d, s[16:19], s44 offen' % (v(gg, 2), t1))
    a('v_lshlrev_b32 v%d, 1, v%d' % (t1, t2))
    a('buffer_load_ushort v%d, v%d, s[12:15], 0 offen' % (b2, t1))
    a('v_mul_u32_u24 v%d, %d, v%d' % (vOT, OTP, t0))
    a('v_bfe_u32 v%d, v0, 5, 2' % t1)
    a('v_lshl_add_u32 v%d, v%d, 3, v%d' % (vOT, t1, vOT))
    a('v_and_b32 v%d, 1, v0' % t1)
    a('v_lshl_add_u32 v%d, v%d, 2, v%d' % (vOT, t1, vOT))
    a('v_add_u32 v%d, %d, v%d' % (vOT, OT, vOT))
    V.reset(m)
    R = V.a(16, 2); x0 = V.a(); x1 = V.a(); y0 = V.a(); y1 = V.a(); o = V.a()
    ACC = V.a(16, 4)
    state = {'first': True}
    def epilogue(dt):
        buf = dt & 1
        for wv in range(8):
            a('ds_read_b64 %s, v%d offset:%d' % (v(R + 2 * wv, 2), vR0 if wv < 4 else vR1, (wv & 3) * STG + buf * 4096))
        a('s_waitcnt lgkmcnt(0)')
        for k in (0, 1):
            a('v_add_f32 v%d, v%d, v%d' % (R + k, R + k, R + 2 + k))
            a('v_add_f32 v%d, v%d, v%d' % (R + 4 + k, R + 4 + k, R + 6 + k))
            a('v_add_f32 v%d, v%d, v%d' % (R + 8 + k, R + 8 + k, R + 10 + k))
            a('v_add_f32 v%d, v%d, v%d' % (R + 12 + k, R + 12 + k, R + 14 + k))
        for k in (0, 1):
            a('v_add_f32 v%d, v%d, v%d' % (R + k, R + k, R + 4 + k))
        for k in (0, 1):
            a('v_add_f32 v%d, v%d, v%d' % (R + k, R + k, R + 8 + k))
        a('v_cvt_pk_bf16_f32 v%d, v%d, v%d' % (o, R, R + 1))
        a('v_lshlrev_b32 v%d, 16, v%d' % (x0, o)); a('v_and_b32 v%d, 0xffff0000, v%d' % (x1, o))
        a('v_add_f32 v%d, v%d, v%d' % (x0, x0, b2)); a('v_add_f32 v%d, v%d, v%d' % (x1, x1, b2))
        a('v_cvt_pk_bf16_f32 v%d, v%d, v%d' % (o, x0, x1))
        a('v_lshlrev_b32 v%d, 16, v%d' % (x0, o)); a('v_and_b32 v%d, 0xffff0000, v%d' % (x1, o))
        a('v_mul_f32 v%d, v%d, v%d' % (x0, x0, gg + 1)); a('v_mul_f32 v%d, v%d, v%d' % (x1, x1, gg + 1))
        a('v_cvt_pk_bf16_f32 v%d, v%d, v%d' % (o, x0, x1))
        a('v_lshlrev_b32 v%d, 16, v%d' % (x0, o)); a('v_and_b32 v%d, 0xffff0000, v%d' % (x1, o))
        a('v_cvt_pk_bf16_f32 v%d, v%d, v%d' % (o, R + 12, R + 13))
        a('v_lshlrev_b32 v%d, 16, v%d' % (y0, o)); a('v_and_b32 v%d, 0xffff0000, v%d' % (y1, o))
        a('v_mul_f32 v%d, v%d, v%d' % (y0, y0, gg)); a('v_mul_f32 v%d, v%d, v%d' % (y1, y1, gg))
        a('v_cvt_pk_bf16_f32 v%d, v%d, v%d' % (o, y0, y1))
        a('v_lshlrev_b32 v%d, 16, v%d' % (y0, o)); a('v_and_b32 v%d, 0xffff0000, v%d' % (y1, o))
        a('v_add_f32 v%d, v%d, v%d' % (x0, x0, y0)); a('v_add_f32 v%d, v%d, v%d' % (x1, x1, y1))
        a('v_cvt_pk_bf16_f32 v%d, v%d, v%d' % (o, x0, x1))
        a('ds_write_b32 v%d, v%d offset:%d' % (vOT, o, dt * 32))
    a('s_cmp_ge_u32 s3, 6')
    a('s_cbranch_scc1 %s_dft' % name)
    mm = V.mark()
    NB = 10
    vA = V.a(); TA = V.a(4)
    dma_voff(a, V, lane, 'perm', S * 2, vA, None)
    a('s_mul_i32 s43, s3, %d' % (9 * 32 * S * 2))
    a('s_lshl_b32 s44, s41, 7')
    a('s_add_u32 s43, s43, s44')
    for st in range(4): issue_w_step(a, 8, vA, vA, 43, 42, S * 2, st, None)
    tr_addr(a, V, (tq, h4, lane), 42, 'perm', TA)
    W = V.a(144, 4); RB = V.a(4 * NB, 4)
    a('s_mul_i32 s45, s3, %d' % (9 * 40960))
    a('s_mul_i32 s46, s40, 5120')
    a('s_add_u32 s45, s45, s46')
    a('s_add_u32 s45, s45, %d' % U_OFF)
    order = [(dt, st) for dt in range(5) for st in range(9)]
    def issue(n):
        dt, st = order[n]
        a('s_add_u32 s47, s45, %d' % (st * 40960 + dt * 1024))
        a('buffer_load_dwordx4 %s, v%d, s[16:19], s47 offen' % (v(RB + 4 * (n % NB), 4), vL16))
    q = ['g', 'g'] + ['w0'] * 4 + ['w1'] * 4 + ['w2'] * 4 + ['w3'] * 4
    def wait_for(tag):
        idx = max(i for i, t in enumerate(q) if t == tag)
        a('s_waitcnt vmcnt(%d)' % min(len(q) - 1 - idx, 63))
    nh = [0]
    for st in range(9):
        wait_for('w%d' % st)
        read_w_step(a, TA, st % 4, 2048, W + 16 * st)
        if st + 4 < 9:
            a('s_waitcnt lgkmcnt(0)')
            issue_w_step(a, 8, vA, vA, 43, 42, S * 2, st % 4, None)
            q += ['w%d' % (st + 4)] * 4
        else:
            for k in range(3 if st < 7 else 2):
                if nh[0] < NB: issue(nh[0]); q.append('h%d' % nh[0]); nh[0] += 1
    a('s_waitcnt lgkmcnt(0)')
    a('v_lshlrev_b32 v%d, 16, v%d' % (b2, b2))
    stream_phase(a, V, name, 9, W, RB, NB, ACC, vL16, 45, q, nh, issue, wait_for, vP, epilogue)
    a('s_branch %s_fin' % name)
    V.reset(mm)
    a.L('%s_dft' % name)
    NB2 = 8
    vZ = V.a()
    W2 = V.a(160, 4); RB2 = V.a(4 * NB2, 4)
    a('v_lshlrev_b32 v%d, 15, v%d' % (vZ, h4))
    a('v_lshl_add_u32 v%d, v%d, 4, v%d' % (vZ, tq, vZ))
    a('s_sub_u32 s44, s3, 6')
    a('s_mul_i32 s43, s44, %d' % (10 * 131072))
    a('s_lshl_b32 s46, s41, 10')
    a('s_add_u32 s43, s43, s46')
    a('s_add_u32 s43, s43, %d' % Z_OFF)
    q2 = ['g', 'g']
    for st in range(10):
        for t in range(4):
            a('buffer_load_dwordx4 %s, v%d, s[16:19], s43 offen offset:%d' % (v(W2 + 16 * st + 4 * t, 4), vZ, 256 * t))
            q2.append('z')
        a('s_add_u32 s43, s43, 131072')
    a('s_mul_i32 s45, s44, %d' % (10 * 40960))
    a('s_mul_i32 s46, s40, 5120')
    a('s_add_u32 s45, s45, s46')
    a('s_add_u32 s45, s45, %d' % FI_OFF)
    order2 = [(dt, st) for dt in range(5) for st in range(10)]
    def issue2(n):
        dt, st = order2[n]
        a('s_add_u32 s47, s45, %d' % (st * 40960 + dt * 1024))
        a('buffer_load_dwordx4 %s, v%d, s[16:19], s47 offen' % (v(RB2 + 4 * (n % NB2), 4), vL16))
    def wait2(tag):
        idx = max(i for i, t in enumerate(q2) if t == tag)
        a('s_waitcnt vmcnt(%d)' % min(len(q2) - 1 - idx, 63))
    nh2 = [0]
    for k in range(NB2):
        issue2(k); q2.append('h%d' % k); nh2[0] += 1
    a('s_waitcnt vmcnt(%d)' % (4 * 10 + NB2 - 0 if False else min(63, 40 + NB2)))
    a('v_lshlrev_b32 v%d, 16, v%d' % (b2, b2))
    stream_phase(a, V, name, 10, W2, RB2, NB2, ACC, vL16, 45, q2, nh2, issue2, wait2, vP, epilogue)
    V.reset(mm)
    a.L('%s_fin' % name)
    a('s_waitcnt lgkmcnt(0)')
    a('s_barrier')
    cid = V.a(); row = V.a(); cc = V.a(); la = V.a(); ga = V.a(); O = V.a(4, 4)
    a('s_mul_i32 s44, s41, %d' % (64 * 1280))
    a('s_mul_i32 s45, s40, 160')
    a('s_add_u32 s44, s44, s45')
    for ps in range(2):
        if ps == 1:
            a('s_cmp_lt_u32 s3, 2')
            a('s_cbranch_scc0 %s_end' % name)
        a('v_add_u32 v%d, %d, v0' % (cid, 512 * ps))
        a('v_mul_u32_u24 v%d, 6554, v%d' % (row, cid))
        a('v_lshrrev_b32 v%d, 16, v%d' % (row, row))
        a('v_mul_u32_u24 v%d, 10, v%d' % (cc, row))
        a('v_sub_u32 v%d, v%d, v%d' % (cc, cid, cc))
        a('v_mul_u32_u24 v%d, %d, v%d' % (la, OTP, row))
        a('v_lshl_add_u32 v%d, v%d, 4, v%d' % (la, cc, la))
        a('v_add_u32 v%d, %d, v%d' % (la, OT, la))
        a('ds_read_b128 %s, v%d' % (v(O, 4), la))
        a('v_mul_u32_u24 v%d, 1280, v%d' % (ga, row))
        a('v_lshl_add_u32 v%d, v%d, 4, v%d' % (ga, cc, ga))
        a('s_waitcnt lgkmcnt(0)')
        a('buffer_store_dwordx4 %s, v%d, s[24:27], s44 offen' % (v(O, 4), ga))
    a.L('%s_end' % name)
    a('s_endpgm')
    return V.hi, K3_LDS
```

```python
import sys
sys.path.insert(0,'dev')
from common import *
import k1
NAME='gated_mix__spectral_gfnet__mixer_token_mlp__prompt'
def build(path, phases=('p1','p2','p3')):
    a=Asm()
    launches=[]; descs=[]
    body=Asm()
    if 'p1' in phases:
        n=k1.gen_p1(body); launches.append('; @launch kernel=p1_kernel grid=(256,1,1) block=(512,1,1) lds=%d'%k1.K1_LDS); descs.append(kernel_desc('p1_kernel',n))
    if 'p2' in phases:
        import k2
        n,l=k2.gen_p2(body); launches.append('; @launch kernel=p2_kernel grid=(256,1,1) block=(512,1,1) lds=%d'%l); descs.append(kernel_desc('p2_kernel',n))
    if 'p3' in phases:
        import k3
        n,l=k3.gen_p3(body); launches.append('; @launch kernel=p3_kernel grid=(256,1,1) block=(512,1,1) lds=%d'%l); descs.append(kernel_desc('p3_kernel',n))
    npad=body.pad()
    hdr=open('cdna_kernels/%s.s.ref'%NAME).read().split('\n')
    hdr=[l for l in hdr if l.startswith(';') and 'Override launch' not in l and 'grid=ceil' not in l and '@launch' not in l and 'v1 = byte' not in l]
    hdr=[l for l in hdr if l.startswith('; Kernarg') or l.startswith(';   offset')]
    txt='\n'.join(hdr)+'\n'+'\n'.join(launches)+'\n.amdgcn_target "amdgcn-amd-amdhsa--gfx950"\n.text\n'+body.text()+'.section .rodata,"a"\n'
    for d in descs: txt+='.p2align 6\n'+d
    open(path,'w').write(txt)
    print('wrote',path,'nops inserted',npad,'bytes',len(txt))
if __name__=='__main__':
    ph=sys.argv[2].split(',') if len(sys.argv)>2 else ('p1','p2','p3')
    build(sys.argv[1],ph)
```

```python
import re

TRANS = ('v_exp_f32','v_log_f32','v_rcp_f32','v_rsq_f32','v_sqrt_f32','v_sin_f32','v_cos_f32','v_rcp_iflag_f32',
         'v_exp_f16','v_log_f16','v_rcp_f16','v_rsq_f16','v_sqrt_f16','v_sin_f16','v_cos_f16')

def regs_of(tok):
    tok = tok.strip()
    neg = tok.lstrip('-')
    m = re.fullmatch(r'abs\((.*)\)', neg)
    if m: neg = m.group(1)
    neg = neg.strip('|')
    m = re.fullmatch(r'([vsa])(\d+)', neg)
    if m: return [(m.group(1), int(m.group(2)))]
    m = re.fullmatch(r'([vsa])\[(\d+):(\d+)\]', neg)
    if m: return [(m.group(1), i) for i in range(int(m.group(2)), int(m.group(3)) + 1)]
    if neg == 'vcc': return [('x', 'vcc')]
    if neg in ('vcc_lo', 'vcc_hi'): return [('x', 'vcc')]
    if neg == 'exec' or neg in ('exec_lo', 'exec_hi'): return [('x', 'exec')]
    if neg == 'm0': return [('x', 'm0')]
    if neg == 'scc': return [('x', 'scc')]
    return []

class Inst:
    def __init__(self, text):
        self.text = text.strip()
        t = self.text.split(';')[0].strip()
        parts = t.split(None, 1)
        self.mn = parts[0]
        rest = parts[1] if len(parts) > 1 else ''
        ops = []; depth = 0; cur = ''
        for ch in rest:
            if ch in '[(': depth += 1
            if ch in '])': depth -= 1
            if ch == ',' and depth == 0:
                ops.append(cur.strip()); cur = ''
            else: cur += ch
        if cur.strip(): ops.append(cur.strip())
        self.mods = ''
        if ops:
            last = ops[-1].split(None, 1)
            if len(last) > 1:
                ops[-1] = last[0]; self.mods = last[1]
        self.ops = ops
        self.classify()

    def classify(self):
        mn = self.mn
        base = re.sub(r'_(e32|e64|dpp|sdwa)$', '', mn)
        self.base = base
        self.is_mfma = mn.startswith('v_mfma') or mn.startswith('v_smfmac')
        self.is_valu = mn.startswith('v_') and not self.is_mfma
        self.is_trans = base in TRANS
        self.is_vmem = mn.startswith(('buffer_', 'global_', 'flat_', 'scratch_'))
        self.is_ds = mn.startswith('ds_')
        self.is_salu = mn.startswith('s_')
        self.is_dpp = mn.endswith('_dpp') or 'row_' in self.mods or 'quad_perm' in self.mods or 'wave_' in self.mods
        self.is_branch = mn.startswith('s_cbranch') or mn == 's_branch'
        self.lds_dma = self.is_vmem and (re.search(r'\blds\b', self.mods) is not None or 'load_lds' in mn)
        ops = self.ops
        d = []; u = []
        R = lambda i: regs_of(ops[i]) if i < len(ops) else []
        allr = lambda a: [r for i in range(a, len(ops)) for r in regs_of(ops[i])]
        self.passes = 0
        self.srcC = []; self.srcAB = []
        if self.is_mfma:
            d = R(0); self.srcAB = R(1) + R(2); self.srcC = R(3); u = self.srcAB + self.srcC
            if '32x32x16' in mn or '32x32x8' in mn or '32x32x32_i8' in mn: self.passes = 8
            elif '16x16x32' in mn or '16x16x16' in mn: self.passes = 4
            else: raise Exception('unknown mfma passes ' + mn)
        elif self.is_valu:
            if base.startswith('v_cmpx'):
                raise Exception('avoid v_cmpx')
            if base.startswith('v_cmp'):
                d = R(0); u = allr(1)
            elif base in ('v_readfirstlane_b32', 'v_readlane_b32'):
                d = R(0); u = allr(1)
            elif base in ('v_permlane32_swap_b32', 'v_permlane16_swap_b32'):
                d = R(0) + R(1); u = R(0) + R(1)
            elif base in ('v_add_co_u32', 'v_sub_co_u32', 'v_subrev_co_u32'):
                d = R(0) + R(1); u = allr(2)
            elif base in ('v_addc_co_u32', 'v_subb_co_u32'):
                d = R(0) + R(1); u = allr(2)
            elif base in ('v_fmac_f32', 'v_pk_fmac_f16', 'v_dot2c_f32_bf16', 'v_fmac_f16', 'v_writelane_b32'):
                d = R(0); u = R(0) + allr(1)
            elif base == 'v_cndmask_b32':
                d = R(0); u = allr(1)
                if len(ops) == 3: u += [('x', 'vcc')]
            elif base == 'v_nop':
                pass
            else:
                d = R(0); u = allr(1)
            if self.is_dpp and base not in ('v_mov_b32',):
                pass
            if self.is_dpp: u = u + R(0)
            u = u + [('x', 'exec')]
        elif self.is_vmem:
            if mn.startswith('buffer_'):
                if mn in ('buffer_inv', 'buffer_wbl2'): pass
                elif 'load' in mn:
                    if self.lds_dma: u = allr(0) + [('x', 'm0')]
                    else: d = R(0); u = allr(1)
                elif 'store' in mn: u = allr(0)
                elif 'atomic' in mn:
                    u = allr(0)
                    if 'sc0' in self.mods: d = R(0)
            else:
                if 'load_lds' in mn: u = allr(0) + [('x', 'm0')]
                elif 'load' in mn: d = R(0); u = allr(1)
                elif 'store' in mn: u = allr(0)
                elif 'atomic' in mn:
                    if 'sc0' in self.mods: d = R(0); u = allr(1)
                    else: u = allr(0)
        elif self.is_ds:
            if mn.startswith(('ds_read', 'ds_bpermute', 'ds_permute', 'ds_swizzle')) : d = R(0); u = allr(1)
            elif mn.startswith('ds_add_rtn') : d = R(0); u = allr(1)
            else: u = allr(0)
        elif self.is_salu:
            if mn in ('s_waitcnt', 's_nop', 's_barrier', 's_endpgm', 's_sleep', 's_setprio', 's_branch') or mn.startswith('s_cbranch'):
                if mn in ('s_cbranch_scc0', 's_cbranch_scc1'): u = [('x', 'scc')]
                if mn in ('s_cbranch_vccz', 's_cbranch_vccnz'): u = [('x', 'vcc')]
                if mn in ('s_cbranch_execz', 's_cbranch_execnz'): u = [('x', 'exec')]
            elif mn.startswith('s_cmp'):
                u = allr(0); d = [('x', 'scc')]
            elif 'saveexec' in mn:
                d = R(0) + [('x', 'exec')]; u = allr(1) + [('x', 'exec')]
            elif mn.startswith('s_load') or mn.startswith('s_buffer_load') or mn in ('s_memtime', 's_memrealtime', 's_getreg_b32'):
                d = R(0); u = allr(1)
            else:
                d = R(0); u = allr(1)
        self.defs = set(d); self.uses = set(u)
        self.wide_store = (self.is_vmem and ('store_dwordx4' in mn or 'store_dwordx3' in mn))
        if self.wide_store:
            self.store_data = set(R(0) if mn.startswith('buffer_') else R(1))
        self.states = 1
        if mn == 's_nop': self.states = int(ops[0], 0) + 1

def vset(s): return {r for r in s if r[0] in 'va'}
def sset(s): return {r for r in s if r[0] == 's' or r == ('x', 'vcc')}

def required(p, c):
    n = 0
    pv = vset(p.defs)
    if p.is_valu:
        if c.is_mfma and pv & vset(c.uses): n = max(n, 2)
        if p.is_trans and c.is_valu and not c.is_trans and pv & c.uses: n = max(n, 1)
        if p.is_trans and (c.is_mfma) and pv & c.uses: n = max(n, 2)
        ps = sset(p.defs)
        if ps:
            if (c.is_valu) and ps & c.uses:
                n = max(n, 4 if c.base in ('v_readlane_b32', 'v_writelane_b32') else 2)
            if c.is_vmem and ps & c.uses: n = max(n, 5)
            if c.is_salu and ps & c.uses: n = max(n, 1)
        if c.is_valu and c.base in ('v_readfirstlane_b32', 'v_readlane_b32') and pv & c.uses: n = max(n, 1)
        if c.is_valu and c.is_dpp and pv & c.uses: n = max(n, 2)
        if c.is_valu and c.base.startswith('v_permlane') and pv & c.uses: n = max(n, 2)
        if ('op_sel' in p.mods or p.mn.endswith('_sdwa')) and not p.base.startswith('v_pk_') and c.is_valu and pv & (c.uses | c.defs): n = max(n, 1)
        if p.base.startswith('v_dot2') and pv & (c.uses | c.defs):
            same_acc = (c.base == p.base and pv & set(regs_of(c.ops[3] if len(c.ops) > 3 else c.ops[0])) and not (pv & set(regs_of(c.ops[1]) + regs_of(c.ops[2]))))
            if not same_acc: n = max(n, 3)
    if p.is_mfma:
        D = vset(p.defs)
        big = {4: 8, 8: 12}[p.passes]; ovl = {4: 6, 8: 10}[p.passes]; war = {4: 3, 8: 7}[p.passes]
        if c.is_mfma:
            if D & set(c.srcAB): n = max(n, big)
            if D & set(c.srcC):
                if not (set(c.srcC) == D and c.passes == p.passes): n = max(n, ovl)
            elif D & c.defs:
                n = max(n, ovl)
        elif c.is_valu or c.is_vmem or c.is_ds:
            if D & (c.uses | c.defs): n = max(n, big)
        if c.is_valu and set(p.srcC) & c.defs: n = max(n, war)
    if p.wide_store and (p.store_data & c.defs):
        n = max(n, 2 if c.is_valu else 1)
    if p.is_salu and ('x', 'm0') in p.defs and (c.lds_dma or 'addtid' in c.mn): n = max(n, 1)
    if p.is_salu and ('x', 'exec') in p.defs and c.is_valu and c.is_dpp: n = max(n, 1)
    return n

MAXW = 13

class Asm:
    def __init__(self):
        self.items = []
    def I(self, text):
        for ln in text.split('\n'):
            ln = ln.strip()
            if not ln: continue
            if ln.startswith(';'): self.items.append(('t', '    ' + ln)); continue
            self.items.append(('i', Inst(ln)))
    __call__ = I
    def L(self, name): self.items.append(('l', name))
    def T(self, text): self.items.append(('t', text))
    def C(self, text): self.items.append(('t', '    ; ' + text))

    def pad(self):
        items = self.items
        labels = {}
        for k, it in enumerate(items):
            if it[0] == 'l': labels[it[1]] = k
            if it[0] == 'i': it[1].pre = 0
        br = {}
        for k, it in enumerate(items):
            if it[0] == 'i' and it[1].is_branch:
                tgt = it[1].ops[0]
                if tgt in labels: br.setdefault(labels[tgt], []).append(k)
        pc = {}
        def preds(k):
            if k in pc: return pc[k]
            out = []; j = k - 1
            while j >= 0:
                it = items[j]
                if it[0] == 'i':
                    if it[1].mn not in ('s_branch', 's_endpgm'): out.append(j)
                    break
                if it[0] == 'l':
                    out += br.get(j, [])
                j -= 1
            pc[k] = out
            return out
        total = 0
        changed = True
        while changed:
            changed = False
            for k, it in enumerate(items):
                if it[0] != 'i': continue
                c = it[1]
                if c.mn == 's_nop': continue
                need = 0
                seen = {}
                stack = [(p, c.pre) for p in preds(k)]
                while stack:
                    j, dist = stack.pop()
                    if seen.get(j, 99) <= dist: continue
                    seen[j] = dist
                    p = items[j][1]
                    r = required(p, c)
                    if r > dist: need = max(need, r - dist)
                    nd = dist + p.states + p.pre
                    if nd < MAXW:
                        for q in preds(j): stack.append((q, nd))
                if need > 0:
                    c.pre += need; total += need; changed = True
        return total

    def text(self):
        out = []
        for it in self.items:
            if it[0] == 'i':
                n = getattr(it[1], 'pre', 0)
                while n > 0:
                    m = min(n, 16); out.append('    s_nop %d' % (m - 1)); n -= m
                out.append('    ' + it[1].text)
            elif it[0] == 'l': out.append(it[1] + ':')
            else: out.append(it[1])
        return '\n'.join(out) + '\n'
```

```python
import struct, math
from asmgen import Asm

S, D, F = 2048, 640, 1728
H_OFF   = 0
X1_OFF  = H_OFF + 64*40*1024
WP_OFF  = X1_OFF + 80*2048*16
PQ_OFF  = WP_OFF + 40*65536
G_OFF   = PQ_OFF + 2048*16
FI_OFF  = G_OFF + 2048*8
U_OFF   = FI_OFF + 800*1024
Z_OFF   = U_OFF + 54*40*1024
FS      = 32
FL1_OFF = Z_OFF + 80*2048*16
FLU_OFF = FL1_OFF + 256*128
FLZ_OFF = FLU_OFF + 256*128
WS_END  = FLZ_OFF + 64*128
PROF_OFF = 64 << 20

P_X, P_WR, P_WI, P_BX, P_W1, P_B1, P_W2, P_B2, P_GW, P_OUT, P_DBG, P_WS = [64 + 2*i for i in range(12)]
SRD_A, SRD_B, SRD_WS, SRD_C, SRD_D = 8, 12, 16, 24, 28
S_NON = 20
S_EX = 22
S_ROLE, S_MD1, S_NF, S_FID, S_MD3, S_NS = 32, 33, 34, 35, 36, 37

STG = 12288
PA = 8 * STG
LDS_TOTAL = PA + 65536

class Cfg:
    prof = False
    sc = ' sc1'
CFG = Cfg()

def f32(x):
    return '0x%08x' % struct.unpack('<I', struct.pack('<f', x))[0]

class RA:
    def __init__(self, cls, start, limit):
        self.cls = cls; self.n = start; self.limit = limit; self.hi = start
    def a(self, cnt=1, align=1):
        while self.n % align: self.n += 1
        r = self.n; self.n += cnt
        assert self.n <= self.limit, 'out of %s regs (%d)' % (self.cls, self.n)
        self.hi = max(self.hi, self.n)
        return r
    def mark(self): return self.n
    def reset(self, m): self.n = m

def v(i, n=1): return 'v%d' % i if n == 1 else 'v[%d:%d]' % (i, i + n - 1)
def s(i, n=1): return 's%d' % i if n == 1 else 's[%d:%d]' % (i, i + n - 1)

def srd(a, r, base, nbytes):
    a('s_mov_b32 s%d, s%d' % (r, base))
    a('s_and_b32 s%d, s%d, 0xffff' % (r + 1, base + 1))
    a('s_mov_b32 s%d, 0x%x' % (r + 2, nbytes))
    a('s_mov_b32 s%d, 0x20000' % (r + 3))

def wave_sum(a, regs):
    for ctl in ('row_shr:1', 'row_shr:2', 'row_shr:4', 'row_shr:8'):
        for r in regs:
            a('v_add_f32_dpp v%d, v%d, v%d %s row_mask:0xf bank_mask:0xf bound_ctrl:0' % (r, r, r, ctl))
    for r in regs:
        a('v_add_f32_dpp v%d, v%d, v%d row_bcast:15 row_mask:0xa bank_mask:0xf' % (r, r, r))
    for r in regs:
        a('v_add_f32_dpp v%d, v%d, v%d row_bcast:31 row_mask:0xc bank_mask:0xf' % (r, r, r))

def rbf(a, dst, src):
    a('v_cvt_pk_bf16_f32 v%d, %s, %s' % (dst, src, src))
    a('v_lshlrev_b32 v%d, 16, v%d' % (dst, dst))

class VQ:
    def __init__(self, a, init=()):
        self.a = a; self.q = list(init)
    def push(self, tag, n=1): self.q += [tag] * n
    def wait(self, tag):
        idx = max(i for i, t in enumerate(self.q) if t == tag)
        n = len(self.q) - 1 - idx
        self.a('s_waitcnt vmcnt(%d)' % min(n, 63))
        self.q = self.q[idx + 1:] if n <= 63 else self.q
    def drain(self):
        self.a('s_waitcnt vmcnt(0)'); self.q = []
    def copy(self):
        return VQ(self.a, self.q)

def prof_stamp(a, slot, sreg=90):
    if not CFG.prof: return
    a('s_memrealtime s[%d:%d]' % (sreg, sreg + 1))
    a('s_lshl_b32 s%d, s2, 3' % (sreg + 2))
    a('s_add_u32 s%d, s%d, s3' % (sreg + 2, sreg + 2))
    a('s_lshl_b32 s%d, s%d, 3' % (sreg + 2, sreg + 2))
    a('s_add_u32 s%d, s%d, %d' % (sreg + 2, sreg + 2, PROF_OFF + slot * 256 * 8 * 8))
    a('s_add_u32 s%d, s%d, s%d' % (sreg + 2, P_WS, sreg + 2))
    a('s_addc_u32 s%d, s%d, 0' % (sreg + 3, P_WS + 1))
    a('s_waitcnt lgkmcnt(0)')
    a('v_mov_b32 v254, s%d' % sreg)
    a('v_mov_b32 v255, s%d' % (sreg + 1))
    a('s_mov_b64 s[%d:%d], exec' % (sreg + 4, sreg + 5))
    a('s_mov_b64 exec, 1')
    a('v_mov_b32 v253, 0')
    a('global_store_dwordx2 v253, v[254:255], s[%d:%d]' % (sreg + 2, sreg + 3))
    a('s_mov_b64 exec, s[%d:%d]' % (sreg + 4, sreg + 5))

SPIN_LIMIT = 1 << 18

def poll_flags(a, name, V, off_sreg_or_imm, nflags, lane, tag):
    m = V.mark()
    vo = V.a(); vo2 = V.a(); nl = (nflags + 63) // 64
    d = V.a(2 * nl, 2)
    a('v_mul_u32_u24 v%d, %d, v%d' % (vo, FS, lane))
    if nl > 2: a('v_add_u32 v%d, %d, v%d' % (vo2, 128 * FS, vo))
    a('s_mov_b32 s60, 0')
    if nflags < 64:
        a('v_cmp_gt_u32 vcc, %d, v%d' % (nflags, lane))
        a('s_and_saveexec_b64 s[%d:%d], vcc' % (S_EX, S_EX + 1))
    a.L('%s_poll_%s' % (name, tag))
    for k in range(nl):
        a('buffer_load_dwordx2 %s, v%d, s[%d:%d], s%d offen offset:%d sc1' % (v(d + 2 * k, 2), vo if k < 2 else vo2, SRD_WS, SRD_WS + 3, off_sreg_or_imm, 64 * FS * (k & 1)))
    a('s_waitcnt vmcnt(0)')
    for k in range(nl):
        a('v_cmp_eq_u64 s[54:55], %s, s[%d:%d]' % (v(d + 2 * k, 2), S_NON, S_NON + 1))
        if k == 0: a('s_mov_b64 s[56:57], s[54:55]')
        else: a('s_and_b64 s[56:57], s[56:57], s[54:55]')
    a('s_cmp_eq_u64 s[56:57], exec')
    a('s_cbranch_scc1 %s_pollok_%s' % (name, tag))
    a('s_add_u32 s60, s60, 1')
    a('s_cmp_lt_u32 s60, %d' % SPIN_LIMIT)
    a('s_cbranch_scc0 %s_pollok_%s' % (name, tag))
    a('s_sleep 1')
    a('s_branch %s_poll_%s' % (name, tag))
    a.L('%s_pollok_%s' % (name, tag))
    if nflags < 64:
        a('s_mov_b64 exec, s[%d:%d]' % (S_EX, S_EX + 1))
    V.reset(m)

def store_flag(a, V, off_sreg):
    m = V.mark()
    d = V.a(2, 2); z = V.a()
    a('v_mov_b32 v%d, s%d' % (d, S_NON)); a('v_mov_b32 v%d, s%d' % (d + 1, S_NON + 1)); a('v_mov_b32 v%d, 0' % z)
    a('s_mov_b64 s[%d:%d], exec' % (S_EX, S_EX + 1))
    a('s_mov_b64 exec, 1')
    a('buffer_store_dwordx2 %s, v%d, s[%d:%d], s%d offen sc1' % (v(d, 2), z, SRD_WS, SRD_WS + 3, off_sreg))
    a('s_mov_b64 exec, s[%d:%d]' % (S_EX, S_EX + 1))
    V.reset(m)
```

```python
from cm import *

CD = 0
F64 = 65536
T1 = F64 + 16384
T2 = T1 + 16384
ZS = T2 + 16384
YS = ZS + 16400
FFT_END = YS + 8192
SC = 2.0 / (640 * 2048)

def mfma32(a, d, A, B, c):
    a('v_mfma_f32_32x32x16_bf16 %s, %s, %s, %s' % (v(d, 16), v(A, 4), v(B, 4), c if c == '0' else v(c, 16)))

def fft_tables(a, V, C):
    lane = C['lane']
    lam = V.a(); hh = V.a(); C['lam'] = lam; C['hh'] = hh
    a('v_and_b32 v%d, 31, v%d' % (lam, lane))
    a('v_lshrrev_b32 v%d, 5, v%d' % (hh, lane))
    Fr = V.a(8, 4); Fi = V.a(8, 4); C['cFr'] = Fr; C['cFi'] = Fi
    m = V.mark()
    lamf = V.a(); hf = V.a()
    a('v_cvt_f32_u32 v%d, v%d' % (lamf, lam))
    a('v_cvt_f32_u32 v%d, v%d' % (hf, hh))
    th = V.a(); arg = V.a(); c0 = V.a(); c1 = V.a(); s0 = V.a(); s1 = V.a(); sg = V.a(); ad = V.a(); fa = V.a()
    O1 = V.a(4, 4); O2 = V.a(4, 4)
    def cs(c, sn):
        a('v_fract_f32 v%d, v%d' % (fa, arg)); a('v_cos_f32 v%d, v%d' % (c, fa)); a('v_sin_f32 v%d, v%d' % (sn, fa))
    a('v_mul_f32 v%d, %s, v%d' % (th, f32(1 / 32.), lamf))
    for jj in range(2):
        a('v_fmaak_f32 v%d, 4.0, v%d, %s' % (arg, hf, f32(8.0 * jj)))
        a('v_mul_f32 v%d, v%d, v%d' % (arg, arg, th))
        for ip in range(2):
            cs(c0, s0); a('v_add_f32 v%d, v%d, v%d' % (arg, arg, th))
            cs(c1, s1); a('v_add_f32 v%d, v%d, v%d' % (arg, arg, th))
            a('v_cvt_pk_bf16_f32 v%d, v%d, v%d' % (Fr + 2 * jj + ip, c0, c1))
            a('v_cvt_pk_bf16_f32 v%d, -v%d, -v%d' % (Fi + 2 * jj + ip, s0, s1))
    a('v_and_b32 v%d, 1, v%d' % (sg, lam))
    a('v_mul_u32_u24 v%d, 0x8000, v%d' % (sg, sg))
    a('v_lshl_or_b32 v%d, v%d, 16, v%d' % (sg, sg, sg))
    for k in range(4):
        a('v_xor_b32 v%d, v%d, v%d' % (Fr + 4 + k, Fr + k, sg))
        a('v_xor_b32 v%d, v%d, v%d' % (Fi + 4 + k, Fi + k, sg))
    a('s_lshr_b32 s44, s3, 2'); a('s_and_b32 s45, s3, 3')
    a('s_lshl_b32 s46, s44, 5')
    a('v_add_u32 v%d, s46, v%d' % (th, lam))
    a('v_cvt_f32_u32 v%d, v%d' % (th, th))
    a('v_mul_f32 v%d, %s, v%d' % (th, f32(1 / 64.), th))
    a('s_lshl_b32 s46, s45, 4')
    for jj in range(2):
        a('v_lshlrev_b32 v%d, 2, v%d' % (arg, hh))
        a('v_add_u32 v%d, s46, v%d' % (arg, arg))
        if jj: a('v_add_u32 v%d, 8, v%d' % (arg, arg))
        a('v_cvt_f32_u32 v%d, v%d' % (arg, arg))
        a('v_mul_f32 v%d, v%d, v%d' % (arg, arg, th))
        for ip in range(2):
            cs(c0, s0); a('v_add_f32 v%d, v%d, v%d' % (arg, arg, th))
            cs(c1, s1); a('v_add_f32 v%d, v%d, v%d' % (arg, arg, th))
            a('v_cvt_pk_bf16_f32 v%d, v%d, v%d' % (O1 + 2 * jj + ip, c0, c1))
            a('v_cvt_pk_bf16_f32 v%d, -v%d, -v%d' % (O2 + 2 * jj + ip, s0, s1))
    a('s_lshl_b32 s46, s3, 10'); a('s_add_u32 s46, s46, %d' % F64)
    a('v_lshlrev_b32 v%d, 4, v%d' % (ad, lane))
    a('v_add_u32 v%d, s46, v%d' % (ad, ad))
    a('ds_write_b128 v%d, %s offset:%d' % (ad, v(O1, 4), 0))
    a('ds_write_b128 v%d, %s offset:%d' % (ad, v(O2, 4), 8192))
    a('s_lshl_b32 s46, s3, 3')
    a('v_lshlrev_b32 v%d, 2, v%d' % (arg, hh))
    a('v_add_u32 v%d, s46, v%d' % (arg, arg))
    a('v_cvt_f32_u32 v%d, v%d' % (arg, arg))
    a('v_mul_f32 v%d, %s, v%d' % (th, f32(1 / 2048.), lamf))
    a('v_mul_f32 v%d, v%d, v%d' % (arg, arg, th))
    O3 = V.a(4, 4); O4 = V.a(4, 4)
    for i in range(4):
        a('v_cos_f32 v%d, v%d' % (O3 + i, arg)); a('v_sin_f32 v%d, v%d' % (O4 + i, arg))
        if i < 3: a('v_add_f32 v%d, v%d, v%d' % (arg, arg, th))
    for i in range(4): a('v_xor_b32 v%d, 0x80000000, v%d' % (O4 + i, O4 + i))
    a('s_lshl_b32 s46, s3, 11'); a('s_add_u32 s46, s46, %d' % F64)
    a('v_lshlrev_b32 v%d, 4, v%d' % (ad, lane))
    a('v_add_u32 v%d, s46, v%d' % (ad, ad))
    a('ds_write_b128 v%d, %s offset:%d' % (ad, v(O3, 4), T1 - F64))
    a('ds_write_b128 v%d, %s offset:%d' % (ad, v(O4, 4), T1 - F64 + 1024))
    O5 = V.a(4, 4); O6 = V.a(4, 4)
    a('s_lshl_b32 s46, s44, 5')
    a('v_add_u32 v%d, s46, v%d' % (th, lam))
    a('v_cvt_f32_u32 v%d, v%d' % (th, th))
    a('v_mul_f32 v%d, %s, v%d' % (th, f32(1 / 2048.), th))
    a('s_lshl_b32 s46, s45, 3')
    a('v_lshlrev_b32 v%d, 2, v%d' % (arg, hh))
    a('v_add_u32 v%d, s46, v%d' % (arg, arg))
    a('v_cvt_f32_u32 v%d, v%d' % (arg, arg))
    a('v_mul_f32 v%d, v%d, v%d' % (arg, arg, th))
    for i in range(4):
        a('v_cos_f32 v%d, v%d' % (O5 + i, arg)); a('v_sin_f32 v%d, v%d' % (O6 + i, arg))
        if i < 3: a('v_add_f32 v%d, v%d, v%d' % (arg, arg, th))
    for i in range(4):
        a('v_mul_f32 v%d, %s, v%d' % (O5 + i, f32(SC), O5 + i))
        a('v_mul_f32 v%d, %s, v%d' % (O6 + i, f32(SC), O6 + i))
    a('ds_write_b128 v%d, %s offset:%d' % (ad, v(O5, 4), T2 - F64))
    a('ds_write_b128 v%d, %s offset:%d' % (ad, v(O6, 4), T2 - F64 + 1024))
    V.reset(m)

def fft_main(a, name, V, C):
    lane, lam, hh, Fr, Fi = C['lane'], C['lam'], C['hh'], C['cFr'], C['cFi']
    sc = CFG.sc
    ws = 's[%d:%d]' % (SRD_WS, SRD_WS + 3)
    v16 = V.a(); vD = V.a(); vL16 = V.a(); vWs = V.a(); vF = V.a()
    a('v_lshlrev_b32 v%d, 4, v0' % v16)
    m = V.mark(); t0 = V.a(); t1 = V.a()
    a('v_and_b32 v%d, 0x39, v%d' % (t0, lane))
    a('v_bfe_u32 v%d, v%d, 1, 1' % (t1, lane))
    a('v_lshl_or_b32 v%d, v%d, 2, v%d' % (t0, t1, t0))
    a('v_bfe_u32 v%d, v%d, 2, 1' % (t1, lane))
    a('v_lshl_or_b32 v%d, v%d, 1, v%d' % (t0, t1, t0))
    a('v_lshlrev_b32 v%d, 2, v%d' % (t0, t0))
    a('s_and_b32 s44, s3, 3'); a('s_lshl_b32 s44, s44, 6')
    a('v_xor_b32 v%d, s44, v%d' % (t0, t0))
    a('s_lshl_b32 s44, s3, 8')
    a('v_add_u32 v%d, s44, v%d' % (vD, t0))
    a('v_lshlrev_b32 v%d, 4, v%d' % (vL16, lane))
    a('v_add_u32 v%d, %d, v%d' % (vF, F64, vL16))
    a('v_and_b32 v%d, 1, v0' % t0)
    a('v_lshlrev_b32 v%d, 15, v%d' % (t0, t0))
    a('v_lshrrev_b32 v%d, 1, v0' % t1)
    a('v_lshl_add_u32 v%d, v%d, 2, v%d' % (vWs, t1, t0))
    V.reset(m)
    a('s_mov_b32 s58, %d' % FL1_OFF)
    poll_flags(a, name, V, 58, 256, lane, 'fft')
    prof_stamp(a, 15)
    XL = V.a(32, 4); WL = V.a(32, 4); PQ = V.a(16, 4)
    a('s_lshl_b32 s41, s%d, 16' % S_FID)
    a('s_add_u32 s42, s41, %d' % X1_OFF)
    for q in range(8):
        a('s_add_u32 s43, s42, %d' % (q * 8192))
        a('buffer_load_dwordx4 %s, v%d, %s, s43 offen%s' % (v(XL + 4 * q, 4), v16, ws, sc))
    a('s_add_u32 s42, s41, %d' % WP_OFF)
    for q in range(8):
        a('s_add_u32 s43, s42, %d' % (q * 8192))
        a('buffer_load_dwordx4 %s, v%d, %s, s43 offen%s' % (v(WL + 4 * q, 4), v16, ws, sc))
    for q in range(4):
        a('s_mov_b32 s43, %d' % (PQ_OFF + q * 8192))
        a('buffer_load_dwordx4 %s, v%d, %s, s43 offen%s' % (v(PQ + 4 * q, 4), v16, ws, sc))
    a('s_waitcnt vmcnt(12)')
    for q in range(8):
        for cc in range(4):
            a('ds_write_b32 v%d, v%d offset:%d' % (vD, XL + 4 * q + cc, CD + (4 * (q >> 2) + cc) * 8192 + (q & 3) * 2048))
    a('s_waitcnt lgkmcnt(0)')
    a('s_barrier')
    prof_stamp(a, 10)
    free_lo = XL
    TRp = free_lo; TIp = free_lo + 16
    AD = V.a(4)
    m1 = V.mark()
    t0 = V.a(); t1 = V.a()
    a('v_bfe_u32 v%d, v%d, 2, 2' % (t0, lane))
    a('v_lshl_add_u32 v%d, v%d, 2, v%d' % (t1, hh, t0))
    a('v_lshlrev_b32 v%d, 8, v%d' % (t1, t1))
    a('v_lshl_add_u32 v%d, v%d, 6, v%d' % (t1, t0, t1))
    a('v_bfe_u32 v%d, v%d, 4, 1' % (t0, lane))
    a('v_lshl_add_u32 v%d, v%d, 5, v%d' % (t1, t0, t1))
    a('v_and_b32 v%d, 3, v%d' % (t0, lane))
    a('v_lshl_add_u32 v%d, v%d, 3, v%d' % (t1, t0, t1))
    a('s_lshl_b32 s44, s3, 13')
    a('v_add_u32 v%d, s44, v%d' % (AD, t1))
    for mb in range(1, 4):
        a('v_xor_b32 v%d, %d, v%d' % (AD + mb, mb << 6, AD))
    V.reset(m1)
    A = V.a(16, 4); P1 = V.a(16, 4); P2 = V.a(16, 4); TW = V.a(16, 4)
    tr = V.a(8); ti = V.a(8); x0 = V.a(); x1 = V.a()
    def ld_A(mb):
        b = A + 8 * (mb & 1)
        for q in range(2):
            for jj in range(2):
                a('ds_read_b64_tr_b16 %s, v%d offset:%d' % (v(b + 4 * q + 2 * jj, 2), AD + mb, CD + q * 4096 + jj * 2048))
    ld_A(0)
    for mb in range(4):
        b = A + 8 * (mb & 1)
        for jj in range(2):
            w8 = (mb >> 1) * 4 + 2 * (mb & 1) + jj
            a('ds_read_b128 %s, v%d offset:%d' % (v(TW + 4 * jj, 4), vF, T1 - F64 + w8 * 2048))
            a('ds_read_b128 %s, v%d offset:%d' % (v(TW + 8 + 4 * jj, 4), vF, T1 - F64 + w8 * 2048 + 1024))
        if mb < 3:
            ld_A(mb + 1); a('s_waitcnt lgkmcnt(8)')
        else:
            a('s_waitcnt lgkmcnt(4)')
        mfma32(a, P1, b, Fr, '0'); mfma32(a, P2, b, Fi, '0')
        mfma32(a, P1, b + 4, Fr + 4, P1); mfma32(a, P2, b + 4, Fi + 4, P2)
        a('s_waitcnt lgkmcnt(%d)' % (4 if mb < 3 else 0))
        for j in range(4):
            for ii in range(2):
                t = 2 * j + ii; r0 = 4 * j + 2 * ii
                a('v_sub_f32 v%d, v%d, v%d' % (tr + t, P1 + r0, P2 + r0 + 1))
                a('v_add_f32 v%d, v%d, v%d' % (ti + t, P2 + r0, P1 + r0 + 1))
        for t in range(0, 8, 2):
            a('v_mul_f32 v%d, v%d, v%d' % (x0, tr + t, TW + t))
            a('v_mul_f32 v%d, v%d, v%d' % (x1, tr + t + 1, TW + t + 1))
            a('v_fma_f32 v%d, -v%d, v%d, v%d' % (x0, ti + t, TW + 8 + t, x0))
            a('v_fma_f32 v%d, -v%d, v%d, v%d' % (x1, ti + t + 1, TW + 8 + t + 1, x1))
            a('v_cvt_pk_bf16_f32 v%d, v%d, v%d' % (TRp + 4 * mb + t // 2, x0, x1))
            a('v_mul_f32 v%d, v%d, v%d' % (x0, tr + t, TW + 8 + t))
            a('v_mul_f32 v%d, v%d, v%d' % (x1, tr + t + 1, TW + 8 + t + 1))
            a('v_fmac_f32 v%d, v%d, v%d' % (x0, ti + t, TW + t))
            a('v_fmac_f32 v%d, v%d, v%d' % (x1, ti + t + 1, TW + t + 1))
            a('v_cvt_pk_bf16_f32 v%d, v%d, v%d' % (TIp + 4 * mb + t // 2, x0, x1))
    V.reset(m1)
    a('s_barrier')
    a('s_waitcnt vmcnt(4)')
    for q in range(8):
        for cc in range(4):
            a('ds_write_b32 v%d, v%d offset:%d' % (vWs, WL + 4 * q + cc, CD + cc * 8192 + q * 1024))
    Xr = V.a(32, 4); Xi = V.a(32, 4); FB = V.a(16, 4); NI = V.a(4, 4)
    m3 = V.mark()
    seq = [(mb, eb) for mb in range(4) for eb in range(2)]
    def ld_F(idx, lb, kb):
        b = FB + 8 * (idx & 1)
        a('ds_read_b128 %s, v%d offset:%d' % (v(b, 4), vF, (lb * 4 + kb) * 1024))
        a('ds_read_b128 %s, v%d offset:%d' % (v(b + 4, 4), vF, 8192 + (lb * 4 + kb) * 1024))
    a('s_waitcnt lgkmcnt(0)')
    ld_F(0, seq[0][1], seq[0][0])
    for idx, (mb, eb) in enumerate(seq):
        b = FB + 8 * (idx & 1)
        if eb == 0:
            for k in range(4): a('v_xor_b32 v%d, 0x80008000, v%d' % (NI + k, TIp + 4 * mb + k))
        if idx + 1 < len(seq):
            ld_F(idx + 1, seq[idx + 1][1], seq[idx + 1][0]); a('s_waitcnt lgkmcnt(2)')
        else: a('s_waitcnt lgkmcnt(0)')
        xr = Xr + 16 * eb; xi = Xi + 16 * eb
        mfma32(a, xr, b, TRp + 4 * mb, '0' if mb == 0 else xr)
        mfma32(a, xi, b + 4, TRp + 4 * mb, '0' if mb == 0 else xi)
        mfma32(a, xr, b + 4, NI, xr)
        mfma32(a, xi, b, TIp + 4 * mb, xi)
    a('s_barrier')
    prof_stamp(a, 11)
    YR = free_lo; YI = free_lo + 16
    vW = V.a(); WW = WL; wr = V.a(); wi = V.a(); y = V.a(4)
    a('v_lshlrev_b32 v%d, 2, v%d' % (vW, lam))
    a('v_lshl_add_u32 v%d, v%d, 9, v%d' % (vW, hh, vW))
    a('s_cmp_eq_u32 s%d, 0' % S_FID)
    a('s_cbranch_scc0 %s_nospecial' % name)
    mS = V.mark()
    vZ = V.a(); zz = V.a(2, 2); tt = V.a(2)
    a('s_cmp_eq_u32 s3, 0')
    a('s_cbranch_scc0 %s_sp_a' % name)
    a('v_lshl_add_u32 v%d, v%d, 7, v%d' % (tt, hh, lam))
    a('v_lshlrev_b32 v%d, 3, v%d' % (vZ, tt))
    a('v_add_u32 v%d, %d, v%d' % (vZ, ZS, vZ))
    for eb in range(2):
        for j in range(4):
            for i in range(4):
                r = 16 * eb + 4 * j + i
                a('v_mov_b32 v%d, v%d' % (zz, Xr + r)); a('v_mov_b32 v%d, v%d' % (zz + 1, Xi + r))
                a('ds_write_b64 v%d, %s offset:%d' % (vZ, v(zz, 2), 256 * (32 * eb + 8 * j + i)))
    a('s_mov_b64 s[46:47], exec'); a('s_mov_b64 exec, 1')
    a('v_mov_b32 v%d, v%d' % (zz, Xr)); a('v_mov_b32 v%d, v%d' % (zz + 1, Xi))
    a('v_mov_b32 v%d, %d' % (tt + 1, ZS + 2048 * 8))
    a('ds_write_b64 v%d, %s' % (tt + 1, v(zz, 2)))
    a('s_mov_b64 exec, s[46:47]')
    a('s_waitcnt lgkmcnt(0)')
    a.L('%s_sp_a' % name)
    a('s_barrier')
    zf = V.a(8, 2); zr = V.a(8, 2); vf = V.a(); vr = V.a(); vy = V.a()
    a('v_lshlrev_b32 v%d, 3, v0' % vf); a('v_add_u32 v%d, %d, v%d' % (vf, ZS, vf))
    a('v_sub_u32 v%d, 2048, v0' % vr); a('v_lshlrev_b32 v%d, 3, v%d' % (vr, vr)); a('v_add_u32 v%d, %d, v%d' % (vr, ZS - 3 * 4096, vr))
    a('v_lshlrev_b32 v%d, 2, v0' % vy); a('v_add_u32 v%d, %d, v%d' % (vy, YS, vy))
    for q in range(4):
        a('ds_read_b64 %s, v%d offset:%d' % (v(zf + 2 * q, 2), vf, 4096 * q))
        a('ds_read_b64 %s, v%d offset:%d' % (v(zr + 2 * q, 2), vr, 4096 * (3 - q)))
    a('s_waitcnt vmcnt(0) lgkmcnt(0)')
    for q in range(4):
        Pr, Pi, Qr, Qi = PQ + 4 * q, PQ + 4 * q + 1, PQ + 4 * q + 2, PQ + 4 * q + 3
        zfr, zfi, zrr, zri = zf + 2 * q, zf + 2 * q + 1, zr + 2 * q, zr + 2 * q + 1
        a('v_mul_f32 v%d, v%d, v%d' % (y, zfr, Pr)); a('v_mul_f32 v%d, v%d, v%d' % (y + 1, zfr, Pi))
        a('v_fma_f32 v%d, -v%d, v%d, v%d' % (y, zfi, Pi, y)); a('v_fmac_f32 v%d, v%d, v%d' % (y + 1, zfi, Pr))
        a('v_fmac_f32 v%d, v%d, v%d' % (y, zrr, Qr)); a('v_fmac_f32 v%d, v%d, v%d' % (y + 1, zrr, Qi))
        a('v_fmac_f32 v%d, v%d, v%d' % (y, zri, Qi)); a('v_fma_f32 v%d, -v%d, v%d, v%d' % (y + 1, zri, Qr, y + 1))
        a('v_cvt_pk_bf16_f32 v%d, v%d, v%d' % (y + 2, y, y + 1))
        a('ds_write_b32 v%d, v%d offset:%d' % (vy, y + 2, 2048 * q))
    a('s_waitcnt lgkmcnt(0)')
    a('s_barrier')
    a('s_cmp_eq_u32 s3, 0')
    a('s_cbranch_scc0 %s_nospecial' % name)
    a('v_add_u32 v%d, %d, v%d' % (vW, YS, vW))
    for eb in range(2):
        for j in range(4):
            for i in range(4):
                a('ds_read_b32 v%d, v%d offset:%d' % (WW + 4 * j + i, vW, 4096 * eb + 1024 * j + 128 * i))
        a('s_waitcnt lgkmcnt(0)')
        a('s_mov_b32 s44, 0x05040100'); a('s_mov_b32 s45, 0x07060302')
        for j in range(4):
            for ip in range(2):
                kq = 2 * eb + (j >> 1); slot = 2 * (j & 1) + ip
                w0 = WW + 4 * j + 2 * ip
                a('v_perm_b32 v%d, v%d, v%d, s44' % (YR + 4 * kq + slot, w0 + 1, w0))
                a('v_perm_b32 v%d, v%d, v%d, s45' % (YI + 4 * kq + slot, w0 + 1, w0))
    a('s_branch %s_filtered' % name)
    V.reset(mS)
    a.L('%s_nospecial' % name)
    a('s_lshl_b32 s44, s3, 13')
    a('v_add_u32 v%d, s44, v%d' % (vW, vW))
    for eb in range(2):
        for j in range(4):
            for i in range(4):
                a('ds_read_b32 v%d, v%d offset:%d' % (WW + 4 * j + i, vW, CD + 4096 * eb + 1024 * j + 128 * i))
        for j in range(4):
            a('s_waitcnt lgkmcnt(%d)' % (12 - 4 * j))
            for ip in range(2):
                for k in range(2):
                    i = 2 * ip + k; r = 16 * eb + 4 * j + i; w = WW + 4 * j + i
                    a('v_lshlrev_b32 v%d, 16, v%d' % (wr, w)); a('v_and_b32 v%d, 0xffff0000, v%d' % (wi, w))
                    a('v_mul_f32 v%d, v%d, v%d' % (y + k, Xr + r, wr)); a('v_mul_f32 v%d, v%d, v%d' % (y + 2 + k, Xr + r, wi))
                    a('v_fma_f32 v%d, -v%d, v%d, v%d' % (y + k, Xi + r, wi, y + k)); a('v_fmac_f32 v%d, v%d, v%d' % (y + 2 + k, Xi + r, wr))
                kq = 2 * eb + (j >> 1); slot = 2 * (j & 1) + ip
                a('v_cvt_pk_bf16_f32 v%d, v%d, v%d' % (YR + 4 * kq + slot, y, y + 1))
                a('v_cvt_pk_bf16_f32 v%d, v%d, v%d' % (YI + 4 * kq + slot, y + 2, y + 3))
    a.L('%s_filtered' % name)
    a('s_waitcnt lgkmcnt(0)')
    a('s_barrier')
    prof_stamp(a, 12)
    Ur = Xr; Ui = Xi
    seq = [(kq, bb) for kq in range(4) for bb in range(2)]
    ld_F(0, seq[0][1], seq[0][0])
    for idx, (kq, bb) in enumerate(seq):
        b = FB + 8 * (idx & 1)
        if bb == 0:
            for k in range(4): a('v_xor_b32 v%d, 0x80008000, v%d' % (NI + k, YR + 4 * kq + k))
        if idx + 1 < len(seq):
            ld_F(idx + 1, seq[idx + 1][1], seq[idx + 1][0]); a('s_waitcnt lgkmcnt(2)')
        else: a('s_waitcnt lgkmcnt(0)')
        ur = Ur + 16 * bb; ui = Ui + 16 * bb
        mfma32(a, ur, YR + 4 * kq, b, '0' if kq == 0 else ur)
        mfma32(a, ui, YI + 4 * kq, b, '0' if kq == 0 else ui)
        mfma32(a, ur, YI + 4 * kq, b + 4, ur)
        mfma32(a, ui, NI, b + 4, ui)
    V.reset(m3)
    vO = V.a(); TW = V.a(8, 4); x0 = V.a(); x1 = V.a()
    UR = free_lo; UI = free_lo + 8; NU = free_lo + 16
    Yr = WL; Yi = WL + 16; ob = V.a(4)
    a('s_lshr_b32 s44, s3, 2'); a('s_lshl_b32 s44, s44, 15')
    a('s_and_b32 s45, s3, 3'); a('s_lshl_b32 s45, s45, 2'); a('s_add_u32 s44, s44, s45')
    a('v_lshlrev_b32 v%d, 4, v%d' % (vO, lam))
    a('v_lshl_add_u32 v%d, v%d, 12, v%d' % (vO, hh, vO))
    a('v_add_u32 v%d, s44, v%d' % (vO, vO))
    for bb in range(2):
        for j in range(4):
            a('ds_read_b128 %s, v%d offset:%d' % (v(TW, 4), vF, T2 - F64 + (bb * 4 + j) * 2048))
            a('ds_read_b128 %s, v%d offset:%d' % (v(TW + 4, 4), vF, T2 - F64 + (bb * 4 + j) * 2048 + 1024))
            a('s_waitcnt lgkmcnt(0)')
            for ip in range(2):
                r = 16 * bb + 4 * j + 2 * ip; t = 2 * ip
                q2 = j >> 1; slot = 2 * (j & 1) + ip
                a('v_mul_f32 v%d, v%d, v%d' % (x0, Ur + r, TW + t)); a('v_mul_f32 v%d, v%d, v%d' % (x1, Ur + r + 1, TW + t + 1))
                a('v_fma_f32 v%d, -v%d, v%d, v%d' % (x0, Ui + r, TW + 4 + t, x0)); a('v_fma_f32 v%d, -v%d, v%d, v%d' % (x1, Ui + r + 1, TW + 4 + t + 1, x1))
                a('v_cvt_pk_bf16_f32 v%d, v%d, v%d' % (UR + 4 * q2 + slot, x0, x1))
                a('v_mul_f32 v%d, v%d, v%d' % (x0, Ur + r, TW + 4 + t)); a('v_mul_f32 v%d, v%d, v%d' % (x1, Ur + r + 1, TW + 4 + t + 1))
                a('v_fmac_f32 v%d, v%d, v%d' % (x0, Ui + r, TW + t)); a('v_fmac_f32 v%d, v%d, v%d' % (x1, Ui + r + 1, TW + t + 1))
                a('v_cvt_pk_bf16_f32 v%d, v%d, v%d' % (UI + 4 * q2 + slot, x0, x1))
        for k in range(8): a('v_xor_b32 v%d, 0x80008000, v%d' % (NU + k, UR + k))
        for q2 in range(2):
            mfma32(a, Yr, Fr + 4 * q2, UR + 4 * q2, '0' if q2 == 0 else Yr)
            mfma32(a, Yi, Fr + 4 * q2, UI + 4 * q2, '0' if q2 == 0 else Yi)
            mfma32(a, Yr, Fi + 4 * q2, UI + 4 * q2, Yr)
            mfma32(a, Yi, Fi + 4 * q2, NU + 4 * q2, Yi)
        for j in range(4):
            for i in range(4):
                a('v_cvt_pk_bf16_f32 v%d, v%d, v%d' % (ob + i, Yr + 4 * j + i, Yi + 4 * j + i))
            for i in range(4):
                a('ds_write_b32 v%d, v%d offset:%d' % (vO, ob + i, CD + bb * 512 + j * 8192 + i * 1024))
    a('s_waitcnt lgkmcnt(0)')
    a('s_barrier')
    prof_stamp(a, 13)
    OB = Xr
    for q in range(8):
        a('ds_read_b128 %s, v%d offset:%d' % (v(OB + 4 * q, 4), v16, CD + q * 8192))
    a('s_add_u32 s42, s41, %d' % Z_OFF)
    for q in range(8):
        a('s_waitcnt lgkmcnt(%d)' % (7 - q))
        a('s_add_u32 s43, s42, %d' % (q * 8192))
        a('buffer_store_dwordx4 %s, v%d, %s, s43 offen%s' % (v(OB + 4 * q, 4), v16, ws, sc))
```

```python
from cm import *

def tr_addr(a, V, C, sw, mode, dst4):
    tq, h4 = C['tq'], C['h4']
    m = V.mark()
    rp = V.a(); c = V.a(); R = V.a(); g = V.a(); t = V.a()
    a('v_lshrrev_b32 v%d, 2, v%d' % (rp, tq))
    a('v_and_b32 v%d, 3, v%d' % (c, tq))
    if mode == 'nat':
        a('v_lshl_add_u32 v%d, v%d, 3, v%d' % (R, h4, rp))
        a('v_and_b32 v%d, 2, v%d' % (g, rp))
        a('v_and_b32 v%d, 1, v%d' % (t, h4))
        a('v_lshl_add_u32 v%d, v%d, 2, v%d' % (g, t, g))
    else:
        a('v_lshl_add_u32 v%d, v%d, 2, v%d' % (R, h4, rp))
        a('v_and_b32 v%d, 6, v%d' % (g, R))
    a('v_lshrrev_b32 v%d, 1, v%d' % (t, c))
    a('v_xor_b32 v%d, v%d, v%d' % (t, t, g))
    a('v_lshlrev_b32 v%d, 4, v%d' % (t, t))
    a('v_lshl_add_u32 v%d, v%d, 7, v%d' % (t, R, t))
    a('v_and_b32 v%d, 1, v%d' % (c, c))
    a('v_lshl_add_u32 v%d, v%d, 3, v%d' % (t, c, t))
    a('v_add_u32 v%d, s%d, v%d' % (dst4, sw, t))
    for cb in range(1, 4):
        a('v_xor_b32 v%d, %d, v%d' % (dst4 + cb, cb << 5, dst4))
    V.reset(m)

def dma_voff(a, V, lane, mode, pitch, dstA, dstB):
    m = V.mark()
    row = V.a(); ch = V.a(); g = V.a()
    a('v_lshrrev_b32 v%d, 3, v%d' % (row, lane))
    a('v_and_b32 v%d, 7, v%d' % (ch, lane))
    a('v_and_b32 v%d, %d, v%d' % (g, 2 if mode == 'nat' else 6, row))
    a('v_xor_b32 v%d, v%d, v%d' % (ch, ch, g))
    a('v_mul_u32_u24 v%d, %d, v%d' % (row, pitch, row))
    a('v_lshl_add_u32 v%d, v%d, 4, v%d' % (dstA, ch, row))
    if mode == 'nat':
        a('v_xor_b32 v%d, 4, v%d' % (ch, ch))
        a('v_lshl_add_u32 v%d, v%d, 4, v%d' % (dstB, ch, row))
    V.reset(m)

def rot_offsets(a, regs, s_rot, stride, s_base=None):
    n = len(regs)
    for k, r in enumerate(regs):
        a('s_add_u32 s%d, s%d, %d' % (r, s_rot, k))
        a('s_cmp_ge_u32 s%d, %d' % (r, n))
        a('s_cselect_b32 s61, %d, 0' % n)
        a('s_sub_u32 s%d, s%d, s61' % (r, r))
        a('s_mul_i32 s%d, s%d, %d' % (r, r, stride))
        if s_base is not None: a('s_add_u32 s%d, s%d, s%d' % (r, r, s_base))

def issue_w(a, srdw, vA, vB, s_row0, s_stg, pitch, slot, nt=''):
    for jj in range(4):
        a('s_add_u32 m0, s%d, %d' % (s_stg, slot * 4096 + jj * 1024))
        if jj == 0: a('s_mov_b32 s62, s%d' % s_row0)
        else: a('s_add_u32 s62, s62, %d' % (8 * pitch))
        a('buffer_load_dwordx4 v%d, s[%d:%d], s62 offen%s lds' % (vB if jj & 1 else vA, srdw, srdw + 3, nt))

def read_w(a, addr4, slot, rd1off, W):
    for cb in range(4):
        a('ds_read_b64_tr_b16 %s, v%d offset:%d' % (v(W + 4 * cb, 2), addr4 + cb, slot * 4096))
        a('ds_read_b64_tr_b16 %s, v%d offset:%d' % (v(W + 4 * cb + 2, 2), addr4 + cb, slot * 4096 + rd1off))

def gelu2(a, x0, x1, t0, t1, out):
    c1 = -2.0 * math.sqrt(2.0 / math.pi) * math.log2(math.e)
    c2 = c1 * 0.044715
    a('v_mul_f32 v%d, v%d, v%d' % (t0, x0, x0)); a('v_mul_f32 v%d, v%d, v%d' % (t1, x1, x1))
    a('v_mov_b32 v%d, %s' % (out, f32(c1)))
    a('v_fmamk_f32 v%d, v%d, %s, v%d' % (t0, t0, f32(c2), out)); a('v_fmamk_f32 v%d, v%d, %s, v%d' % (t1, t1, f32(c2), out))
    a('v_mul_f32 v%d, v%d, v%d' % (t0, t0, x0)); a('v_mul_f32 v%d, v%d, v%d' % (t1, t1, x1))
    a('v_exp_f32 v%d, v%d' % (t0, t0)); a('v_exp_f32 v%d, v%d' % (t1, t1))
    a('v_add_f32 v%d, 1.0, v%d' % (t0, t0)); a('v_add_f32 v%d, 1.0, v%d' % (t1, t1))
    a('v_rcp_f32 v%d, v%d' % (t0, t0)); a('v_rcp_f32 v%d, v%d' % (t1, t1))
    a('v_mul_f32 v%d, v%d, v%d' % (t0, t0, x0)); a('v_mul_f32 v%d, v%d, v%d' % (t1, t1, x1))
    a('v_cvt_pk_bf16_f32 v%d, v%d, v%d' % (out, t0, t1))


S_STG = 38
WOFF = list(range(40, 49))
HOFF = [64, 65, 66, 67, 68, 69, 70, 71, 80, 81]
DTB = [49, 50, 51, 52, 53]
DTO = [96, 97, 98, 99, 100]
NB1 = 16
def nb1(): return 15 if CFG.prof else 16

def g1_prefetch(a, V, C, q):
    lane = C['lane']
    vA = C['g1vA']; vB = C['g1vB']
    dma_voff(a, V, lane, 'nat', F * 2, vA, vB)
    a('s_mul_i32 s%d, s3, %d' % (S_STG, STG))
    srd(a, SRD_W1, P_W1, S * F * 2)
    a('s_and_b32 s63, s%d, 3' % S_MD1); a('s_lshl_b32 s63, s63, 1')
    a('s_mul_i32 s59, s3, %d' % (256 * F * 2))
    a('s_lshl_b32 s58, s%d, 7' % S_NF)
    a('s_add_u32 s59, s59, s58')
    rot_offsets(a, WOFF[:8], 63, 32 * F * 2, 59)

def g1_issue0(a, V, C):
    vA = C['g1vA']; vB = C['g1vB']
    for st in range(3):
        issue_w(a, SRD_W1, vA, vB, WOFF[st], S_STG, F * 2, st, W1POL)

W1POL = ''
W2POL = ''

SRD_W1 = 4

def reduce8(a, R, vR0, vR1, buf):
    for wv in range(8):
        off = buf * 32768 + wv * 4096
        a('ds_read_b64 %s, v%d offset:%d' % (v(R + 2 * wv, 2), vR0, off))

def g1_main(a, name, V, C, q):
    lane, tq, h4 = C['lane'], C['tq'], C['h4']
    vA, vB = C['g1vA'], C['g1vB']
    sc = CFG.sc
    ws = 's[%d:%d]' % (SRD_WS, SRD_WS + 3)
    TA = V.a(4); vL16 = V.a(); bias = V.a(); vP = V.a(); vR0 = V.a(); vU = V.a()
    W = V.a(128, 4)
    tr_addr(a, V, C, S_STG, 'nat', TA)
    a('s_waitcnt vmcnt(5)')
    for st in range(3):
        read_w(a, TA, st, 512, W + 16 * st)
    a('s_waitcnt lgkmcnt(0)')
    for st in range(3, 6):
        issue_w(a, SRD_W1, vA, vB, WOFF[st], S_STG, F * 2, st - 3, W1POL)
    a('s_waitcnt vmcnt(12)')
    q.q = ['w3'] * 4 + ['w4'] * 4 + ['w5'] * 4
    a('s_barrier')
    get_nonce_fn(a, name, V, C)
    a('s_cmp_eq_u32 s3, 0')
    a('s_cbranch_scc0 %s_nofl1' % name)
    a('s_mul_i32 s58, s2, %d' % FS); a('s_add_u32 s58, s58, %d' % FL1_OFF)
    store_flag(a, V, 58)
    a.L('%s_nofl1' % name)
    q.push('fl')
    prof_stamp(a, 1)
    srd(a, SRD_B, P_B1, F * 2)
    m = V.mark(); t0 = V.a(); t1 = V.a()
    a('v_lshrrev_b32 v%d, 8, v0' % t0)
    a('v_lshlrev_b32 v%d, 5, v%d' % (t0, t0))
    a('v_bfe_u32 v%d, v0, 1, 1' % t1)
    a('v_lshl_add_u32 v%d, v%d, 4, v%d' % (t0, t1, t0))
    a('v_bfe_u32 v%d, v0, 6, 2' % t1)
    a('v_lshl_add_u32 v%d, v%d, 2, v%d' % (t0, t1, t0))
    a('v_and_b32 v%d, 1, v0' % t1)
    a('v_lshl_add_u32 v%d, v%d, 1, v%d' % (t0, t1, t0))
    a('v_lshlrev_b32 v%d, 1, v%d' % (t0, t0))
    a('s_lshl_b32 s58, s%d, 7' % S_NF)
    a('buffer_load_dword v%d, v%d, s[%d:%d], s58 offen' % (bias, t0, SRD_B, SRD_B + 3))
    a('v_lshrrev_b32 v%d, 8, v0' % t0)
    a('v_bfe_u32 v%d, v0, 1, 1' % t1)
    a('v_lshl_add_u32 v%d, v%d, 1, v%d' % (t0, t0, t1))
    a('v_lshlrev_b32 v%d, 10, v%d' % (t0, t0))
    a('v_bfe_u32 v%d, v0, 2, 6' % t1)
    a('v_lshl_add_u32 v%d, v%d, 4, v%d' % (t0, t1, t0))
    a('v_and_b32 v%d, 1, v0' % t1)
    a('v_lshl_add_u32 v%d, v%d, 3, v%d' % (vR0, t1, t0))
    a('v_add_u32 v%d, %d, v%d' % (vR0, PA, vR0))
    a('v_lshrrev_b32 v%d, 8, v0' % t0)
    a('v_mul_u32_u24 v%d, 40960, v%d' % (t0, t0))
    a('v_and_b32 v%d, 255, v0' % t1)
    a('v_lshl_add_u32 v%d, v%d, 2, v%d' % (vU, t1, t0))
    V.reset(m)
    a('v_lshlrev_b32 v%d, 4, v%d' % (vL16, lane))
    a('s_lshl_b32 s58, s3, 12'); a('s_add_u32 s58, s58, %d' % PA)
    a('v_add_u32 v%d, s58, v%d' % (vP, vL16))
    q.q = ['w3'] * 4 + ['w4'] * 4 + ['w5'] * 4 + ['b']
    for st in range(3, 8):
        q.wait('w%d' % st)
        read_w(a, TA, st % 3, 512, W + 16 * st)
        if st + 3 < 8:
            a('s_waitcnt lgkmcnt(0)')
            issue_w(a, SRD_W1, vA, vB, WOFF[st + 3], S_STG, F * 2, st % 3, W1POL)
            q.push('w%d' % (st + 3), 4)
    a('s_waitcnt lgkmcnt(0)')
    prof_stamp(a, 7)
    a('s_and_b32 s63, s%d, 3' % S_MD1); a('s_lshl_b32 s63, s63, 1')
    rot_offsets(a, HOFF[:8], 63, 40960)
    a('s_mul_i32 s59, s3, %d' % (8 * 40960)); a('s_mul_i32 s58, s%d, 5120' % S_MD1); a('s_add_u32 s59, s59, s58'); a('s_add_u32 s59, s59, %d' % H_OFF)
    a('s_mul_i32 s63, s%d, 52' % S_NF); a('s_lshr_b32 s63, s63, 8'); a('s_mul_i32 s63, s63, 5'); a('s_sub_u32 s63, s%d, s63' % S_NF)
    rot_offsets(a, DTB, 63, 1024, 59)
    a('s_mul_i32 s59, s%d, %d' % (S_NF, 2 * 40960)); a('s_add_u32 s59, s59, s58'); a('s_add_u32 s59, s59, %d' % U_OFF)
    rot_offsets(a, DTO, 63, 1024, 59)
    p3_prefetch(a, name, V, C)
    a('s_cmp_eq_u32 s3, 7')
    a('s_cbranch_scc0 %s_g1nopoll' % name)
    a('s_mov_b32 s58, %d' % FL1_OFF)
    poll_flags(a, name, V, 58, 256, lane, 'g1')
    a.L('%s_g1nopoll' % name)
    a('s_barrier')
    prof_stamp(a, 15)
    mS = V.mark()
    ACC = V.a(16, 4); RB = V.a(4 * NB1, 4)
    R = V.a(16, 2); x0 = V.a(); x1 = V.a(); t0 = V.a(); t1 = V.a(); o = V.a(); b0 = V.a(); b1 = V.a()
    q = VQ(a)
    order = [(dt, st) for dt in range(5) for st in range(8)]
    def issue(n):
        dt, st = order[n]
        a('s_add_u32 s58, s%d, s%d' % (DTB[dt], HOFF[st]))
        a('buffer_load_dwordx4 %s, v%d, %s, s58 offen%s' % (v(RB + 4 * (n % NB1), 4), vL16, ws, sc))
        q.push('h%d' % n)
    nh = 0
    for k in range(NB1): issue(nh); nh += 1
    for dt in range(5):
        for st in range(8):
            n = dt * 8 + st
            q.wait('h%d' % n)
            if n == 0:
                a('v_lshlrev_b32 v%d, 16, v%d' % (b0, bias))
                a('v_and_b32 v%d, 0xffff0000, v%d' % (b1, bias))
            for ft in range(4):
                c = '0' if st == 0 else v(ACC + 4 * ft, 4)
                a('v_mfma_f32_16x16x32_bf16 %s, %s, %s, %s' % (v(ACC + 4 * ft, 4), v(W + 16 * st + 4 * ft, 4), v(RB + 4 * (n % NB1), 4), c))
            if nh < 40: issue(nh); nh += 1
        buf = dt & 1
        for ft in range(4):
            a('ds_write_b128 v%d, %s offset:%d' % (vP, v(ACC + 4 * ft, 4), buf * 32768 + ft * 1024))
        a('s_waitcnt lgkmcnt(0)')
        a('s_barrier')
        reduce8(a, R, vR0, None, buf)
        a('s_waitcnt lgkmcnt(0)')
        for k in (0, 1):
            a('v_add_f32 v%d, v%d, v%d' % (R + k, R + k, R + 2 + k))
            a('v_add_f32 v%d, v%d, v%d' % (R + 4 + k, R + 4 + k, R + 6 + k))
            a('v_add_f32 v%d, v%d, v%d' % (R + 8 + k, R + 8 + k, R + 10 + k))
            a('v_add_f32 v%d, v%d, v%d' % (R + 12 + k, R + 12 + k, R + 14 + k))
        for k in (0, 1):
            a('v_add_f32 v%d, v%d, v%d' % (R + k, R + k, R + 4 + k))
            a('v_add_f32 v%d, v%d, v%d' % (R + 8 + k, R + 8 + k, R + 12 + k))
        for k in (0, 1):
            a('v_add_f32 v%d, v%d, v%d' % (R + k, R + k, R + 8 + k))
        a('v_cvt_pk_bf16_f32 v%d, v%d, v%d' % (o, R, R + 1))
        a('v_lshlrev_b32 v%d, 16, v%d' % (x0, o)); a('v_and_b32 v%d, 0xffff0000, v%d' % (x1, o))
        a('v_add_f32 v%d, v%d, v%d' % (x0, x0, b0)); a('v_add_f32 v%d, v%d, v%d' % (x1, x1, b1))
        a('v_cvt_pk_bf16_f32 v%d, v%d, v%d' % (o, x0, x1))
        a('v_lshlrev_b32 v%d, 16, v%d' % (x0, o)); a('v_and_b32 v%d, 0xffff0000, v%d' % (x1, o))
        gelu2(a, x0, x1, t0, t1, o)
        a('buffer_store_dword v%d, v%d, %s, s%d offen%s' % (o, vU, ws, DTO[dt], sc))
        q.push('st')
    V.reset(mS)
    prof_stamp(a, 3)
    a('s_waitcnt vmcnt(0)')
    a('s_barrier')
    a('s_cmp_eq_u32 s3, 0')
    a('s_cbranch_scc0 %s_nofl2' % name)
    a('s_lshl_b32 s58, s%d, 5' % S_MD1); a('s_add_u32 s58, s58, s%d' % S_NF); a('s_mul_i32 s58, s58, %d' % FS); a('s_add_u32 s58, s58, %d' % FLU_OFF)
    store_flag(a, V, 58)
    a.L('%s_nofl2' % name)

get_nonce_fn = None

OT = 6 * STG
OTP = 176

def p3_setup_w(a, V, C):
    lane = C['lane']
    if 'p3vA' not in C:
        raise Exception

def p3_prefetch(a, name, V, C):
    lane = C['lane']; vA = C['p3vA']
    dma_voff(a, V, lane, 'perm', S * 2, vA, None)
    srd(a, SRD_W1, P_W2, F * S * 2)
    a('s_mul_i32 s%d, s3, %d' % (S_STG, STG))
    a('s_cmp_ge_u32 s3, 6')
    a('s_cbranch_scc1 %s_nop3pf_%d' % (name, C['pfid']))
    a('s_and_b32 s63, s%d, 3' % S_MD3); a('s_lshl_b32 s63, s63, 1')
    a('s_mul_i32 s59, s3, %d' % (9 * 32 * S * 2)); a('s_lshl_b32 s58, s%d, 7' % S_NS); a('s_add_u32 s59, s59, s58')
    rot_offsets(a, WOFF, 63, 32 * S * 2, 59)
    for st in range(3):
        issue_w(a, SRD_W1, vA, vA, WOFF[st], S_STG, S * 2, st, W2POL)
    a.L('%s_nop3pf_%d' % (name, C['pfid']))
    C['pfid'] += 1

def p3_main(a, name, V, C):
    lane, tq, h4 = C['lane'], C['tq'], C['h4']
    sc = CFG.sc
    ws = 's[%d:%d]' % (SRD_WS, SRD_WS + 3)
    vA = C['p3vA']
    srd(a, SRD_B, P_B2, S * 2)
    srd(a, SRD_C, P_OUT, S * D * 2)
    vL16 = V.a(); vP = V.a(); vR0 = V.a(); vOT = V.a(); gg = V.a(2, 2); b2 = V.a(); vOTd = V.a(); vG = V.a()
    a('v_lshlrev_b32 v%d, 4, v%d' % (vL16, lane))
    a('s_lshl_b32 s58, s3, 12'); a('s_add_u32 s58, s58, %d' % PA)
    a('v_add_u32 v%d, s58, v%d' % (vP, vL16))
    a('v_lshlrev_b32 v%d, 3, v0' % vR0)
    a('v_add_u32 v%d, %d, v%d' % (vR0, PA, vR0))
    m = V.mark(); t0 = V.a(); t1 = V.a(); t2 = V.a()
    a('v_lshrrev_b32 v%d, 7, v0' % t0)
    a('v_bfe_u32 v%d, v0, 1, 4' % t1)
    a('v_lshl_add_u32 v%d, v%d, 4, v%d' % (t0, t0, t1))
    a('s_lshl_b32 s58, s%d, 6' % S_NS)
    a('v_add_u32 v%d, s58, v%d' % (t2, t0))
    a('v_lshlrev_b32 v%d, 1, v%d' % (t1, t2))
    a('buffer_load_ushort v%d, v%d, s[%d:%d], 0 offen' % (b2, t1, SRD_B, SRD_B + 3))
    a('v_mul_u32_u24 v%d, %d, v%d' % (vOT, OTP, t0))
    a('v_bfe_u32 v%d, v0, 5, 2' % t1)
    a('v_lshl_add_u32 v%d, v%d, 3, v%d' % (vOT, t1, vOT))
    a('v_and_b32 v%d, 1, v0' % t1)
    a('v_lshl_add_u32 v%d, v%d, 2, v%d' % (vOT, t1, vOT))
    a('v_add_u32 v%d, %d, v%d' % (vOT, OT, vOT))
    a('v_lshlrev_b32 v%d, 3, v%d' % (vG, t2))
    V.reset(m)
    R = V.a(16, 2); x0 = V.a(); x1 = V.a(); y0 = V.a(); y1 = V.a(); o = V.a()
    ACC = V.a(16, 4)
    a('s_mul_i32 s63, s%d, 52' % S_NS); a('s_lshr_b32 s63, s63, 8'); a('s_mul_i32 s63, s63, 5'); a('s_sub_u32 s63, s%d, s63' % S_NS)
    a('s_mov_b32 s57, s63')
    rot_offsets(a, DTO, 63, 32)
    def epilogue(dt):
        buf = dt & 1
        reduce8(a, R, vR0, None, buf)
        a('v_add_u32 v%d, s%d, v%d' % (vOTd, DTO[dt], vOT))
        a('s_waitcnt lgkmcnt(0)')
        for k in (0, 1):
            a('v_add_f32 v%d, v%d, v%d' % (R + k, R + k, R + 2 + k))
            a('v_add_f32 v%d, v%d, v%d' % (R + 4 + k, R + 4 + k, R + 6 + k))
            a('v_add_f32 v%d, v%d, v%d' % (R + 8 + k, R + 8 + k, R + 10 + k))
            a('v_add_f32 v%d, v%d, v%d' % (R + 12 + k, R + 12 + k, R + 14 + k))
        for k in (0, 1): a('v_add_f32 v%d, v%d, v%d' % (R + k, R + k, R + 4 + k))
        for k in (0, 1): a('v_add_f32 v%d, v%d, v%d' % (R + k, R + k, R + 8 + k))
        a('v_cvt_pk_bf16_f32 v%d, v%d, v%d' % (o, R, R + 1))
        a('v_lshlrev_b32 v%d, 16, v%d' % (x0, o)); a('v_and_b32 v%d, 0xffff0000, v%d' % (x1, o))
        a('v_add_f32 v%d, v%d, v%d' % (x0, x0, b2)); a('v_add_f32 v%d, v%d, v%d' % (x1, x1, b2))
        a('v_cvt_pk_bf16_f32 v%d, v%d, v%d' % (o, x0, x1))
        a('v_lshlrev_b32 v%d, 16, v%d' % (x0, o)); a('v_and_b32 v%d, 0xffff0000, v%d' % (x1, o))
        a('v_mul_f32 v%d, v%d, v%d' % (x0, x0, gg + 1)); a('v_mul_f32 v%d, v%d, v%d' % (x1, x1, gg + 1))
        a('v_cvt_pk_bf16_f32 v%d, v%d, v%d' % (o, x0, x1))
        a('v_lshlrev_b32 v%d, 16, v%d' % (x0, o)); a('v_and_b32 v%d, 0xffff0000, v%d' % (x1, o))
        a('v_cvt_pk_bf16_f32 v%d, v%d, v%d' % (o, R + 12, R + 13))
        a('v_lshlrev_b32 v%d, 16, v%d' % (y0, o)); a('v_and_b32 v%d, 0xffff0000, v%d' % (y1, o))
        a('v_mul_f32 v%d, v%d, v%d' % (y0, y0, gg)); a('v_mul_f32 v%d, v%d, v%d' % (y1, y1, gg))
        a('v_cvt_pk_bf16_f32 v%d, v%d, v%d' % (o, y0, y1))
        a('v_lshlrev_b32 v%d, 16, v%d' % (y0, o)); a('v_and_b32 v%d, 0xffff0000, v%d' % (y1, o))
        a('v_add_f32 v%d, v%d, v%d' % (x0, x0, y0)); a('v_add_f32 v%d, v%d, v%d' % (x1, x1, y1))
        a('v_cvt_pk_bf16_f32 v%d, v%d, v%d' % (o, x0, x1))
        a('ds_write_b32 v%d, v%d' % (vOTd, o))
    def stream(q, nsteps, W, RB, NB, issue, nh, first):
        for dt in range(5):
            for st in range(nsteps):
                n = dt * nsteps + st
                q.wait('h%d' % n)
                if n == 0: first()
                for t in range(4):
                    c = '0' if st == 0 else v(ACC + 4 * t, 4)
                    a('v_mfma_f32_16x16x32_bf16 %s, %s, %s, %s' % (v(ACC + 4 * t, 4), v(RB + 4 * (n % NB), 4), v(W + 16 * st + 4 * t, 4), c))
                if nh[0] < 5 * nsteps: issue(nh[0]); nh[0] += 1
            buf = dt & 1
            for t in range(4):
                a('ds_write_b128 v%d, %s offset:%d' % (vP, v(ACC + 4 * t, 4), buf * 32768 + t * 1024))
            a('s_waitcnt lgkmcnt(0)')
            a('s_barrier')
            epilogue(dt)
    a('s_cmp_ge_u32 s3, 6')
    a('s_cbranch_scc1 %s_dft' % name)
    mm = V.mark()
    NB = 10 if CFG.prof else 11
    TA = V.a(4)
    tr_addr(a, V, C, S_STG, 'perm', TA)
    W = V.a(144, 4); RB = V.a(4 * NB, 4)
    q = VQ(a, ['w0'] * 4 + ['w1'] * 4 + ['w2'] * 4 + ['b'])
    for st in range(9):
        q.wait('w%d' % st)
        read_w(a, TA, st % 3, 2048, W + 16 * st)
        if st + 3 < 9:
            a('s_waitcnt lgkmcnt(0)')
            issue_w(a, SRD_W1, vA, vA, WOFF[st + 3], S_STG, S * 2, st % 3, W2POL)
            q.push('w%d' % (st + 3), 4)
    a('s_waitcnt lgkmcnt(0)')
    prof_stamp(a, 8)
    a('s_and_b32 s63, s%d, 3' % S_MD3); a('s_lshl_b32 s63, s63, 1')
    rot_offsets(a, HOFF[:9], 63, 40960)
    a('s_mul_i32 s59, s3, %d' % (9 * 40960)); a('s_mul_i32 s58, s%d, 5120' % S_MD3); a('s_add_u32 s59, s59, s58'); a('s_add_u32 s59, s59, %d' % U_OFF)
    rot_offsets(a, DTB, 57, 1024, 59)
    a('s_mul_i32 s58, s3, 9'); a('s_lshr_b32 s58, s58, 1')
    a('s_lshl_b32 s59, s%d, 5' % S_MD3); a('s_add_u32 s58, s58, s59'); a('s_mul_i32 s58, s58, %d' % FS); a('s_add_u32 s58, s58, %d' % FLU_OFF)
    poll_flags(a, name, V, 58, 5, lane, 'p3u')
    prof_stamp(a, 5)
    q = VQ(a)
    a('s_mov_b32 s56, %d' % G_OFF)
    a('buffer_load_dwordx2 %s, v%d, %s, s56 offen%s' % (v(gg, 2), vG, ws, sc)); q.push('g')
    order = [(dt, st) for dt in range(5) for st in range(9)]
    def issue(n):
        dt, st = order[n]
        a('s_add_u32 s58, s%d, s%d' % (DTB[dt], HOFF[st]))
        a('buffer_load_dwordx4 %s, v%d, %s, s58 offen%s' % (v(RB + 4 * (n % NB), 4), vL16, ws, sc))
        q.push('h%d' % n)
    nh = [0]
    for k in range(NB): issue(k); nh[0] += 1
    def first(): a('v_lshlrev_b32 v%d, 16, v%d' % (b2, b2))
    stream(q, 9, W, RB, NB, issue, nh, first)
    a('s_branch %s_fin' % name)
    V.reset(mm)
    a.L('%s_dft' % name)
    NB2 = 6 if CFG.prof else 7
    vZ = V.a()
    W2 = V.a(160, 4); RB2 = V.a(4 * NB2, 4)
    a('v_lshlrev_b32 v%d, 15, v%d' % (vZ, h4))
    a('v_lshl_add_u32 v%d, v%d, 4, v%d' % (vZ, tq, vZ))
    a('s_sub_u32 s55, s3, 6')
    a('s_and_b32 s63, s%d, 3' % S_MD3); a('s_lshl_b32 s63, s63, 1')
    rot_offsets(a, HOFF, 63, 40960)
    a('s_mul_i32 s59, s55, %d' % (10 * 40960)); a('s_mul_i32 s58, s%d, 5120' % S_MD3); a('s_add_u32 s59, s59, s58'); a('s_add_u32 s59, s59, %d' % FI_OFF)
    rot_offsets(a, DTB, 57, 1024, 59)
    a('s_mul_i32 s59, s55, %d' % (10 * 131072)); a('s_lshl_b32 s58, s%d, 10' % S_NS); a('s_add_u32 s59, s59, s58'); a('s_add_u32 s59, s59, %d' % Z_OFF)
    ZOFF = WOFF + [39]
    rot_offsets(a, ZOFF, 63, 131072, 59)
    a('s_mul_i32 s58, s55, %d' % (20 * FS)); a('s_add_u32 s58, s58, %d' % FLZ_OFF)
    poll_flags(a, name, V, 58, 20, lane, 'p3z')
    prof_stamp(a, 5)
    q2 = VQ(a)
    a('s_mov_b32 s56, %d' % G_OFF)
    a('buffer_load_dwordx2 %s, v%d, %s, s56 offen%s' % (v(gg, 2), vG, ws, sc)); q2.push('g')
    for st in range(10):
        for t in range(4):
            a('buffer_load_dwordx4 %s, v%d, %s, s%d offen offset:%d%s' % (v(W2 + 16 * st + 4 * t, 4), vZ, ws, ZOFF[st], 256 * t, sc))
            q2.push('z')
    order2 = [(dt, st) for dt in range(5) for st in range(10)]
    def issue2(n):
        dt, st = order2[n]
        a('s_add_u32 s58, s%d, s%d' % (DTB[dt], HOFF[st]))
        a('buffer_load_dwordx4 %s, v%d, %s, s58 offen%s' % (v(RB2 + 4 * (n % NB2), 4), vL16, ws, sc))
        q2.push('h%d' % n)
    nh2 = [0]
    for k in range(NB2): issue2(k); nh2[0] += 1
    stream(q2, 10, W2, RB2, NB2, issue2, nh2, first)
    V.reset(mm)
    a.L('%s_fin' % name)
    a('s_waitcnt lgkmcnt(0)')
    a('s_barrier')
    prof_stamp(a, 6)
    cid = V.a(); row = V.a(); cc = V.a(); la = V.a(); ga = V.a(); O = V.a(4, 4)
    a('s_mul_i32 s58, s%d, %d' % (S_NS, 64 * 1280)); a('s_mul_i32 s59, s%d, 160' % S_MD3); a('s_add_u32 s58, s58, s59')
    for ps in range(2):
        if ps == 1:
            a('s_cmp_lt_u32 s3, 2')
            a('s_cbranch_scc0 %s_end' % name)
        a('v_add_u32 v%d, %d, v0' % (cid, 512 * ps))
        a('v_mul_u32_u24 v%d, 6554, v%d' % (row, cid))
        a('v_lshrrev_b32 v%d, 16, v%d' % (row, row))
        a('v_mul_u32_u24 v%d, 10, v%d' % (cc, row))
        a('v_sub_u32 v%d, v%d, v%d' % (cc, cid, cc))
        a('v_mul_u32_u24 v%d, %d, v%d' % (la, OTP, row))
        a('v_lshl_add_u32 v%d, v%d, 4, v%d' % (la, cc, la))
        a('v_add_u32 v%d, %d, v%d' % (la, OT, la))
        a('ds_read_b128 %s, v%d' % (v(O, 4), la))
        a('v_mul_u32_u24 v%d, 1280, v%d' % (ga, row))
        a('v_lshl_add_u32 v%d, v%d, 4, v%d' % (ga, cc, ga))
        a('s_waitcnt lgkmcnt(0)')
        a('buffer_store_dwordx4 %s, v%d, s[%d:%d], s58 offen' % (v(O, 4), ga, SRD_C, SRD_C + 3))
```

```python
from cm import *

XP = 1344
XI = 0
HI = 8 * XP
OP = 1296
OI = 2 * 8 * XP
WT = OI + 8 * OP
DUM = WT + 8 * OP
P1_SIZE = DUM + 512
PB = PA

def p1_issue(a, V, C, q):
    lane = C['lane']
    a('s_lshl_b32 s96, s2, 3')
    a('s_add_u32 s97, s96, s3')
    a('s_mul_i32 s98, s97, 1280')
    srd(a, SRD_A, P_X, S * D * 2)
    srd(a, SRD_B, P_GW, D * 2)
    voff4 = V.a(); C['voff4'] = voff4
    a('v_lshlrev_b32 v%d, 2, v%d' % (voff4, lane))
    X = V.a(5); G = V.a(5); C['X'] = X; C['G'] = G
    for j in range(5):
        a('buffer_load_dword v%d, v%d, s[%d:%d], s98 offen offset:%d nt' % (X + j, voff4, SRD_A, SRD_A + 3, 256 * j))
    q.push('x', 5)
    for j in range(5):
        a('buffer_load_dword v%d, v%d, s[%d:%d], 0 offen offset:%d' % (G + j, voff4, SRD_B, SRD_B + 3, 256 * j))
    q.push('g', 5)
    srd(a, SRD_C, P_WR, S * 321 * 2)
    srd(a, SRD_D, P_WI, S * 321 * 2)
    WR = V.a(5); WI = V.a(5); SP = V.a(2); C['WR'] = WR; C['WI'] = WI; C['SP'] = SP
    m = V.mark(); v2 = V.a(); t0 = V.a(); t1 = V.a()
    a('v_lshlrev_b32 v%d, 1, v%d' % (v2, lane))
    a('s_mul_i32 s99, s97, 642')
    for j in range(5):
        a('buffer_load_ushort v%d, v%d, s[%d:%d], s99 offen offset:%d nt' % (WR + j, v2, SRD_C, SRD_C + 3, 128 * j))
        a('buffer_load_ushort v%d, v%d, s[%d:%d], s99 offen offset:%d nt' % (WI + j, v2, SRD_D, SRD_D + 3, 128 * j))
    q.push('w', 10)
    a('s_sub_u32 s100, 2048, s97'); a('s_and_b32 s100, s100, 2047'); a('s_mul_i32 s100, s100, 642')
    a('v_mov_b32 v%d, s99' % t0); a('v_mov_b32 v%d, s100' % t1)
    a('v_and_b32 v%d, 1, v%d' % (v2, lane))
    a('v_cmp_eq_u32 vcc, 1, v%d' % v2)
    a('v_cndmask_b32 v%d, v%d, v%d, vcc' % (t0, t0, t1))
    a('v_bfe_u32 v%d, v%d, 1, 1' % (v2, lane))
    a('v_mul_u32_u24 v%d, 640, v%d' % (v2, v2))
    a('v_add_u32 v%d, v%d, v%d' % (t0, t0, v2))
    a('buffer_load_ushort v%d, v%d, s[%d:%d], 0 offen' % (SP, t0, SRD_C, SRD_C + 3))
    a('buffer_load_ushort v%d, v%d, s[%d:%d], 0 offen' % (SP + 1, t0, SRD_D, SRD_D + 3))
    q.push('sp', 2)
    V.reset(m)

def p1_consts(a, V, C):
    tq, h4, lane, voff4 = C['tq'], C['h4'], C['lane'], C['voff4']
    tf = V.a(); hf = V.a()
    a('v_cvt_f32_u32 v%d, v%d' % (tf, tq))
    a('v_cvt_f32_u32 v%d, v%d' % (hf, h4))
    B1r = V.a(4, 4); B1i = V.a(4, 4); TWr = V.a(8, 2); TWi = V.a(8, 2); Fr = V.a(8, 4); Fi = V.a(8, 4)
    C.update(B1r=B1r, B1i=B1i, TWr=TWr, TWi=TWi, Fr=Fr, Fi=Fi)
    m = V.mark()
    th = V.a(); arg = V.a(); mA = V.a(); mB = V.a(); c0 = V.a(); c1 = V.a(); s0 = V.a(); s1 = V.a()
    a('v_cmp_ge_u32 vcc, 10, v%d' % tq)
    a('v_cndmask_b32 v%d, 0, 1.0, vcc' % mA)
    a('v_mov_b32 v%d, v%d' % (mB, mA))
    a('v_cmp_ge_u32 vcc, 2, v%d' % h4)
    a('v_cndmask_b32 v%d, 0, v%d, vcc' % (mA, mA))
    a('v_cmp_ge_u32 vcc, 1, v%d' % h4)
    a('v_cndmask_b32 v%d, 0, v%d, vcc' % (mB, mB))
    a('v_mul_f32 v%d, %s, v%d' % (th, f32(1 / 20.), tf))
    a('v_mul_f32 v%d, %s, v%d' % (arg, f32(8.0), hf))
    a('v_mul_f32 v%d, v%d, v%d' % (arg, arg, th))
    for jp in range(4):
        mk = mA if jp < 2 else mB
        a('v_cos_f32 v%d, v%d' % (c0, arg)); a('v_sin_f32 v%d, v%d' % (s0, arg))
        a('v_add_f32 v%d, v%d, v%d' % (arg, arg, th))
        a('v_cos_f32 v%d, v%d' % (c1, arg)); a('v_sin_f32 v%d, v%d' % (s1, arg))
        a('v_add_f32 v%d, v%d, v%d' % (arg, arg, th))
        a('v_mul_f32 v%d, v%d, v%d' % (c0, c0, mk)); a('v_mul_f32 v%d, v%d, v%d' % (c1, c1, mk))
        a('v_mul_f32_e64 v%d, -v%d, v%d' % (s0, s0, mk)); a('v_mul_f32_e64 v%d, -v%d, v%d' % (s1, s1, mk))
        a('v_cvt_pk_bf16_f32 v%d, v%d, v%d' % (B1r + jp, c0, c1))
        a('v_cvt_pk_bf16_f32 v%d, v%d, v%d' % (B1i + jp, s0, s1))
    a('v_mul_f32 v%d, %s, v%d' % (th, f32(1 / 640.), tf))
    for pb in range(2):
        a('v_fmaak_f32 v%d, 4.0, v%d, %s' % (arg, hf, f32(16.0 * pb)))
        a('v_mul_f32 v%d, v%d, v%d' % (arg, arg, th))
        for i in range(4):
            a('v_cos_f32 v%d, v%d' % (TWr + 4 * pb + i, arg))
            a('v_sin_f32 v%d, v%d' % (TWi + 4 * pb + i, arg))
            if i < 3: a('v_add_f32 v%d, v%d, v%d' % (arg, arg, th))
    for i in range(8):
        a('v_xor_b32 v%d, 0x80000000, v%d' % (TWi + i, TWi + i))
    a('v_mul_f32 v%d, %s, v%d' % (th, f32(1 / 32.), tf))
    for half in range(2):
        a('v_fmaak_f32 v%d, 4.0, v%d, %s' % (arg, hf, f32(16.0 * half)))
        a('v_mul_f32 v%d, v%d, v%d' % (arg, arg, th))
        for jp in range(2):
            a('v_cos_f32 v%d, v%d' % (c0, arg)); a('v_sin_f32 v%d, v%d' % (s0, arg))
            a('v_add_f32 v%d, v%d, v%d' % (arg, arg, th))
            a('v_cos_f32 v%d, v%d' % (c1, arg)); a('v_sin_f32 v%d, v%d' % (s1, arg))
            a('v_add_f32 v%d, v%d, v%d' % (arg, arg, th))
            a('v_cvt_pk_bf16_f32 v%d, v%d, v%d' % (Fr + 2 * half + jp, c0, c1))
            a('v_cvt_pk_bf16_f32 v%d, -v%d, -v%d' % (Fi + 2 * half + jp, s0, s1))
    for k in range(4):
        a('v_xor_b32 v%d, 0x80000000, v%d' % (Fr + 4 + k, Fr + k))
        a('v_xor_b32 v%d, 0x80000000, v%d' % (Fi + 4 + k, Fi + k))
    V.reset(m)
    vXW = V.a(); vT0 = V.a(); vT1 = V.a(); vHR = V.a(); vO0 = V.a(); vO1 = V.a()
    C.update(vXW=vXW, vT0=vT0, vT1=vT1, vHR=vHR, vO0=vO0, vO1=vO1)
    m = V.mark()
    t0 = V.a(); t1 = V.a(); t2 = V.a()
    a('s_mul_i32 s101, s3, %d' % XP)
    a('s_add_u32 s101, s101, %d' % PB)
    a('v_add_u32 v%d, s101, v%d' % (vXW, voff4))
    a('v_lshrrev_b32 v%d, 2, v%d' % (t0, tq))
    a('v_and_b32 v%d, 3, v%d' % (t1, tq))
    a('v_lshl_add_u32 v%d, v%d, 3, v%d' % (t2, h4, t0))
    a('v_cmp_eq_u32 vcc, 3, v%d' % h4)
    a('v_cndmask_b32 v%d, v%d, v%d, vcc' % (t2, t2, t0))
    a('v_lshlrev_b32 v%d, 6, v%d' % (t2, t2))
    a('v_lshl_add_u32 v%d, v%d, 3, v%d' % (t2, t1, t2))
    a('v_add_u32 v%d, s101, v%d' % (vT0, t2))
    a('v_lshl_add_u32 v%d, v%d, 3, v%d' % (t2, h4, t0))
    a('v_add_u32 v%d, 4, v%d' % (t2, t2))
    a('v_cmp_le_u32 vcc, 2, v%d' % h4)
    a('v_cndmask_b32 v%d, v%d, v%d, vcc' % (t2, t2, t0))
    a('v_lshlrev_b32 v%d, 6, v%d' % (t2, t2))
    a('v_lshl_add_u32 v%d, v%d, 3, v%d' % (t2, t1, t2))
    a('v_add_u32 v%d, s101, v%d' % (vT1, t2))
    a('v_mul_u32_u24 v%d, %d, v%d' % (t2, XP, t0))
    a('v_lshl_add_u32 v%d, v%d, 5, v%d' % (t2, h4, t2))
    a('v_lshl_add_u32 v%d, v%d, 3, v%d' % (t2, t1, t2))
    a('s_lshl_b32 s49, s3, 7')
    a('s_add_u32 s49, s49, %d' % (PB + HI))
    a('v_add_u32 v%d, s49, v%d' % (vHR, t2))
    a('v_mul_u32_u24 v%d, 80, v%d' % (t2, h4))
    a('v_add_u32 v%d, v%d, v%d' % (t2, t2, tq))
    a('s_mul_i32 s49, s3, %d' % OP)
    a('s_add_u32 s49, s49, %d' % (PB + OI))
    a('v_lshlrev_b32 v%d, 2, v%d' % (t0, t2))
    a('v_add_u32 v%d, s49, v%d' % (vO0, t0))
    a('v_mov_b32 v%d, %d' % (t1, PB + DUM))
    a('v_cmp_lt_u32 vcc, 10, v%d' % tq)
    a('v_cndmask_b32 v%d, v%d, v%d, vcc' % (vO0, vO0, t1))
    a('s_add_u32 s49, s49, %d' % (4 * 320 - 240))
    a('v_sub_u32 v%d, s49, v%d' % (vO1, t0))
    a('v_cmp_le_u32 vcc, 10, v%d' % tq)
    a('v_cndmask_b32 v%d, v%d, v%d, vcc' % (vO1, vO1, t1))
    a('v_cmp_eq_u32 vcc, 0, v%d' % tq)
    a('v_cndmask_b32 v%d, v%d, v%d, vcc' % (vO1, vO1, t1))
    V.reset(m)
    cid = V.a(); OUT = V.a(4, 4); C.update(cid=cid, FOUT=OUT)
    m = V.mark()
    fr = V.a(); kb = V.a(); dt = V.a(); dd = V.a(); jj = V.a(); arg = V.a(); c0 = V.a(); s0 = V.a(); dn = V.a()
    a('s_mul_i32 s49, s2, 200')
    a('v_add_u32 v%d, s49, v0' % cid)
    a('v_lshrrev_b32 v%d, 6, v%d' % (fr, cid))
    a('v_mul_u32_u24 v%d, 205, v%d' % (kb, fr))
    a('v_lshrrev_b32 v%d, 13, v%d' % (kb, kb))
    a('v_mul_u32_u24 v%d, 40, v%d' % (dt, kb))
    a('v_sub_u32 v%d, v%d, v%d' % (dt, fr, dt))
    a('v_and_b32 v%d, 15, v%d' % (dd, cid))
    a('v_lshl_add_u32 v%d, v%d, 4, v%d' % (dd, dt, dd))
    a('v_bfe_u32 v%d, v%d, 4, 2' % (jj, cid))
    a('v_lshlrev_b32 v%d, 2, v%d' % (jj, jj))
    a('v_lshl_add_u32 v%d, v%d, 4, v%d' % (jj, kb, jj))
    a('v_cvt_f32_u32 v%d, v%d' % (dn, dd))
    a('v_mul_f32 v%d, %s, v%d' % (dn, f32(1 / 640.), dn))
    for e in range(4):
        a('v_add_u32 v%d, %d, v%d' % (arg, e, jj))
        a('v_cvt_f32_u32 v%d, v%d' % (arg, arg))
        a('v_mul_f32 v%d, v%d, v%d' % (arg, arg, dn))
        a('v_fract_f32 v%d, v%d' % (arg, arg))
        a('v_cos_f32 v%d, v%d' % (c0, arg))
        a('v_sin_f32 v%d, v%d' % (s0, arg))
        a('v_xor_b32 v%d, 0x80000000, v%d' % (s0, s0))
        if e == 0:
            a('v_and_b32 v%d, 1, v%d' % (arg, dd))
            a('v_lshlrev_b32 v%d, 31, v%d' % (arg, arg))
            a('v_or_b32 v%d, 1.0, v%d' % (arg, arg))
            a('v_cmp_eq_u32 vcc, 0, v%d' % jj)
            a('v_cndmask_b32 v%d, v%d, v%d, vcc' % (s0, s0, arg))
        a('v_cvt_pk_bf16_f32 v%d, v%d, v%d' % (OUT + e, c0, s0))
    a('v_lshlrev_b32 v%d, 4, v%d' % (cid, cid))
    V.reset(m)

def role_wait(a, name, tag, nG, nF):
    if nG == nF:
        a('s_waitcnt vmcnt(%d)' % nG); return
    a('s_cmp_eq_u32 s%d, 0' % S_ROLE)
    a('s_cbranch_scc1 %s_rw_%s' % (name, tag))
    a('s_waitcnt vmcnt(%d)' % nF)
    a.L('%s_rw_%s' % (name, tag))
    a('s_waitcnt vmcnt(%d)' % nG)

def p1_compute(a, name, V, C, nextra, mid_hook):
    lane, tq, h4 = C['lane'], C['tq'], C['h4']
    X, G, WR, WI, SP = C['X'], C['G'], C['WR'], C['WI'], C['SP']
    vXW, vT0, vT1, vHR, vO0, vO1 = C['vXW'], C['vT0'], C['vT1'], C['vHR'], C['vO0'], C['vO1']
    sc = CFG.sc
    xf = V.a(10); sm = V.a(); sp = V.a(); t0 = V.a(); t1 = V.a(); t2 = V.a(); t3 = V.a()
    NV = C['NV']
    a('s_waitcnt vmcnt(17)')
    prof_stamp(a, 9)
    for j in range(5):
        a('ds_write_b32 v%d, v%d offset:%d' % (vXW, X + j, XI + 256 * j))
    a('v_mov_b32 v%d, 0' % t3)
    a('global_load_dwordx2 %s, v%d, s[%d:%d] sc1' % (v(NV, 2), t3, P_DBG, P_DBG + 1))
    mid_hook()
    A0 = V.a(4, 4); A1 = V.a(4, 4); Tr = V.a(8, 4); Ti = V.a(8, 4)
    a('s_mov_b32 s49, 0x3f803f80')
    a('v_mov_b32 v%d, 0' % sm); a('v_mov_b32 v%d, 0' % sp)
    a('s_waitcnt lgkmcnt(0)')
    for pb, A in ((0, A0), (1, A1)):
        a('ds_read_b64_tr_b16 %s, v%d offset:%d' % (v(A, 2), vT0, XI + 32 * pb))
        a('ds_read_b64_tr_b16 %s, v%d offset:%d' % (v(A + 2, 2), vT1, XI + 32 * pb))
    for j in range(5):
        a('v_dot2_f32_bf16 v%d, v%d, s49, v%d' % (sm, X + j, sm))
    role_wait(a, name, 'g', 13 + nextra, 13)
    for j in range(5):
        a('v_dot2_f32_bf16 v%d, v%d, v%d, v%d' % (sp, X + j, G + j, sp))
    for j in range(5):
        a('v_lshlrev_b32 v%d, 16, v%d' % (xf + 2 * j, X + j))
        a('v_and_b32 v%d, 0xffff0000, v%d' % (xf + 2 * j + 1, X + j))
    a('s_waitcnt lgkmcnt(0)')
    for pb, A in ((0, A0), (1, A1)):
        a('v_mfma_f32_16x16x32_bf16 %s, %s, %s, 0' % (v(Tr + 4 * pb, 4), v(A, 4), v(C['B1r'], 4)))
        a('v_mfma_f32_16x16x32_bf16 %s, %s, %s, 0' % (v(Ti + 4 * pb, 4), v(A, 4), v(C['B1i'], 4)))
    wave_sum(a, [sm, sp])
    a('v_readlane_b32 s49, v%d, 63' % sm)
    a('v_readlane_b32 s50, v%d, 63' % sp)
    Pr = V.a(8, 2); Pi = V.a(8, 2)
    TWr, TWi, Fr, Fi = C['TWr'], C['TWi'], C['Fr'], C['Fi']
    for k in range(0, 8, 2):
        a('v_pk_mul_f32 %s, %s, %s' % (v(Pr + k, 2), v(Tr + k, 2), v(TWr + k, 2)))
        a('v_pk_mul_f32 %s, %s, %s' % (v(Pi + k, 2), v(Tr + k, 2), v(TWi + k, 2)))
    for k in range(0, 8, 2):
        a('v_pk_fma_f32 %s, %s, %s, %s neg_lo:[1,0,0] neg_hi:[1,0,0]' % (v(Pr + k, 2), v(Ti + k, 2), v(TWi + k, 2), v(Pr + k, 2)))
        a('v_pk_fma_f32 %s, %s, %s, %s' % (v(Pi + k, 2), v(Ti + k, 2), v(TWr + k, 2), v(Pi + k, 2)))
    Br = V.a(4, 4); Bi = V.a(4, 4); Bn = V.a(4, 4)
    for k in range(4):
        a('v_cvt_pk_bf16_f32 v%d, v%d, v%d' % (Br + k, Pr + 2 * k, Pr + 2 * k + 1))
        a('v_cvt_pk_bf16_f32 v%d, v%d, v%d' % (Bi + k, Pi + 2 * k, Pi + 2 * k + 1))
    for k in range(4):
        a('v_xor_b32 v%d, 0x80008000, v%d' % (Bn + k, Bi + k))
    Xr = Tr; Xi = Ti
    for rb in range(2):
        a('v_mfma_f32_16x16x32_bf16 %s, %s, %s, 0' % (v(Xr + 4 * rb, 4), v(Fr + 4 * rb, 4), v(Br, 4)))
        a('v_mfma_f32_16x16x32_bf16 %s, %s, %s, 0' % (v(Xi + 4 * rb, 4), v(Fi + 4 * rb, 4), v(Br, 4)))
    for rb in range(2):
        a('v_mfma_f32_16x16x32_bf16 %s, %s, %s, %s' % (v(Xr + 4 * rb, 4), v(Fi + 4 * rb, 4), v(Bn, 4), v(Xr + 4 * rb, 4)))
        a('v_mfma_f32_16x16x32_bf16 %s, %s, %s, %s' % (v(Xi + 4 * rb, 4), v(Fr + 4 * rb, 4), v(Bi, 4), v(Xi + 4 * rb, 4)))
    a('v_mov_b32 v%d, %s' % (t0, f32(1 / 640.)))
    a('v_mul_f32 v%d, s49, v%d' % (sm, t0))
    for j in range(10):
        a('v_sub_f32 v%d, v%d, v%d' % (xf + j, xf + j, sm))
    a('v_mul_f32 v%d, v%d, v%d' % (t2, xf, xf)); a('v_mul_f32 v%d, v%d, v%d' % (t1, xf + 1, xf + 1))
    for j in range(2, 10, 2):
        a('v_fmac_f32 v%d, v%d, v%d' % (t2, xf + j, xf + j)); a('v_fmac_f32 v%d, v%d, v%d' % (t1, xf + j + 1, xf + j + 1))
    a('v_add_f32 v%d, v%d, v%d' % (t2, t2, t1))
    wave_sum(a, [t2])
    a('v_cmp_eq_u32 vcc, 0, v%d' % lane)
    a('v_cndmask_b32 v%d, v%d, v%d, vcc' % (Xi, Xi, Xr + 4))
    for i in range(4):
        a('v_cvt_pk_bf16_f32 v%d, v%d, v%d' % (Pr + i, Xr + i, Xi + i))
        a('v_cvt_pk_bf16_f32 v%d, v%d, -v%d' % (Pr + 4 + i, Xr + 4 + i, Xi + 4 + i))
    for i in range(4):
        a('ds_write_b32 v%d, v%d offset:%d' % (vO0, Pr + i, 80 * i))
        a('ds_write_b32 v%d, v%d offset:%d' % (vO1, Pr + 4 + i, 80 * (3 - i)))
    a('v_readlane_b32 s49, v%d, 63' % t2)
    a('v_mul_f32 v%d, s49, v%d' % (t2, t0))
    a('v_add_f32 v%d, %s, v%d' % (t2, f32(1e-5), t2))
    a('v_rsq_f32 v%d, v%d' % (t2, t2))
    gp = V.a(2, 2)
    a('v_mov_b32 v%d, s50' % t0)
    rbf(a, t0, 'v%d' % t0)
    a('v_mul_f32 v%d, %s, v%d' % (t0, f32(-math.log2(math.e)), t0))
    for j in range(5):
        a('v_mul_f32 v%d, v%d, v%d' % (xf + 2 * j, xf + 2 * j, t2))
        a('v_mul_f32 v%d, v%d, v%d' % (xf + 2 * j + 1, xf + 2 * j + 1, t2))
        a('v_cvt_pk_bf16_f32 v%d, v%d, v%d' % (t3, xf + 2 * j, xf + 2 * j + 1))
        a('ds_write_b32 v%d, v%d offset:%d' % (vXW, t3, HI + 256 * j))
    a('v_exp_f32 v%d, v%d' % (t0, t0))
    a('v_add_f32 v%d, 1.0, v%d' % (t0, t0))
    a('v_rcp_f32 v%d, v%d' % (t0, t0))
    rbf(a, gp, 'v%d' % t0)
    a('v_sub_f32 v%d, 1.0, v%d' % (t0, gp))
    rbf(a, gp + 1, 'v%d' % t0)
    wa = V.a()
    a('s_mul_i32 s51, s3, %d' % (XP - OP))
    a('v_subrev_u32 v%d, s51, v%d' % (wa, vXW))
    role_wait(a, name, 'w', 1 + nextra, 1)
    for j in range(5):
        a('v_lshl_or_b32 v%d, v%d, 16, v%d' % (t0, WI + j, WR + j))
        a('ds_write_b32 v%d, v%d offset:%d' % (wa, t0, WT + 256 * j))
    PQ = V.a(4, 4); q0 = V.a(8)
    a('v_lshlrev_b32 v%d, 16, v%d' % (SP, SP)); a('v_lshlrev_b32 v%d, 16, v%d' % (SP + 1, SP + 1))
    for k in range(4):
        a('v_mov_b32_dpp v%d, v%d quad_perm:[%d,%d,%d,%d] row_mask:0xf bank_mask:0xf' % (q0 + k, SP, k, k, k, k))
        a('v_mov_b32_dpp v%d, v%d quad_perm:[%d,%d,%d,%d] row_mask:0xf bank_mask:0xf' % (q0 + 4 + k, SP + 1, k, k, k, k))
    a('v_add_f32 v%d, v%d, v%d' % (q0, q0, q0 + 1))
    a('v_sub_f32 v%d, v%d, v%d' % (q0 + 4, q0 + 4, q0 + 5))
    a('v_add_f32 v%d, v%d, v%d' % (q0 + 2, q0 + 2, q0 + 3))
    a('v_sub_f32 v%d, v%d, v%d' % (q0 + 6, q0 + 6, q0 + 7))
    a('v_add_f32 v%d, v%d, v%d' % (PQ, q0, q0 + 2)); a('v_add_f32 v%d, v%d, v%d' % (PQ + 1, q0 + 4, q0 + 6))
    a('v_sub_f32 v%d, v%d, v%d' % (PQ + 2, q0, q0 + 2)); a('v_sub_f32 v%d, v%d, v%d' % (PQ + 3, q0 + 4, q0 + 6))
    for k in range(4): a('v_mul_f32 v%d, 0x3e000000, v%d' % (PQ + k, PQ + k))
    a('s_waitcnt lgkmcnt(0)')
    a('s_barrier')
    prof_stamp(a, 14)
    a('s_lshl_b32 s51, s97, 3'); a('s_add_u32 s51, s51, %d' % G_OFF)
    a('s_lshl_b32 s52, s97, 4'); a('s_add_u32 s52, s52, %d' % PQ_OFF)
    a('v_mov_b32 v%d, 0' % t0)
    HO = V.a(4, 4); HO2 = V.a(4, 4); hv = V.a(); XO = V.a(4, 4); XO2 = V.a(4, 4); xa = V.a(); xg = V.a()
    WO = V.a(4, 4); WO2 = V.a(4, 4); wl = V.a(); wg = V.a()
    a('ds_read_b64_tr_b16 %s, v%d' % (v(HO, 2), vHR))
    a('ds_read_b64_tr_b16 %s, v%d offset:%d' % (v(HO + 2, 2), vHR, 4 * XP))
    a('v_and_b32 v%d, 7, v0' % t1)
    a('v_lshrrev_b32 v%d, 3, v0' % t2)
    a('v_mul_u32_u24 v%d, %d, v%d' % (xa, OP, t1))
    a('v_lshl_add_u32 v%d, v%d, 4, v%d' % (xa, t2, xa))
    a('v_add_u32 v%d, %d, v%d' % (xa, PB + OI, xa))
    a('ds_read_b128 %s, v%d' % (v(XO, 4), xa))
    a('v_lshlrev_b32 v%d, 15, v%d' % (xg, t2))
    a('v_lshl_add_u32 v%d, v%d, 4, v%d' % (xg, t1, xg))
    a('v_bfe_u32 v%d, v0, 1, 3' % t1)
    a('v_mul_u32_u24 v%d, %d, v%d' % (wl, OP, t1))
    a('v_lshrrev_b32 v%d, 4, v0' % t2)
    a('v_lshl_add_u32 v%d, v%d, 5, v%d' % (wl, t2, wl))
    a('v_and_b32 v%d, 1, v0' % t1)
    a('v_lshl_add_u32 v%d, v%d, 4, v%d' % (wl, t1, wl))
    a('v_add_u32 v%d, %d, v%d' % (wl, PB + WT, wl))
    a('ds_read_b128 %s, v%d' % (v(WO, 4), wl))
    a('v_lshlrev_b32 v%d, 16, v%d' % (wg, t2))
    a('v_and_b32 v%d, 15, v0' % t1)
    a('v_lshl_add_u32 v%d, v%d, 4, v%d' % (wg, t1, wg))
    a('v_lshlrev_b32 v%d, 10, v%d' % (hv, h4))
    a('v_lshl_add_u32 v%d, v%d, 4, v%d' % (hv, tq, hv))
    a('s_lshr_b32 s53, s2, 2'); a('s_mul_i32 s53, s53, 40960')
    a('s_and_b32 s54, s2, 3'); a('s_lshl_b32 s54, s54, 8')
    a('s_add_u32 s53, s53, s54'); a('s_add_u32 s53, s53, %d' % H_OFF)
    a('s_lshl_b32 s54, s3, 12'); a('s_add_u32 s54, s53, s54')
    a('s_lshl_b32 s55, s96, 4'); a('s_add_u32 s55, s55, %d' % X1_OFF)
    a('s_lshl_b32 s56, s96, 5'); a('s_add_u32 s56, s56, %d' % WP_OFF)
    ws = 's[%d:%d]' % (SRD_WS, SRD_WS + 3)
    a('s_cmp_lt_u32 s3, 2')
    a('s_cbranch_scc0 %s_p1skip2' % name)
    a('ds_read_b64_tr_b16 %s, v%d offset:%d' % (v(HO2, 2), vHR, 1024))
    a('ds_read_b64_tr_b16 %s, v%d offset:%d' % (v(HO2 + 2, 2), vHR, 1024 + 4 * XP))
    a('ds_read_b128 %s, v%d offset:%d' % (v(XO2, 4), xa, 1024))
    a('ds_read_b128 %s, v%d offset:%d' % (v(WO2, 4), wl, 1024))
    a('s_add_u32 s57, s54, %d' % (8 * 4096))
    a('s_add_u32 s58, s55, %d' % (64 * 32768))
    a('s_add_u32 s59, s56, %d' % (32 * 65536))
    a('s_waitcnt lgkmcnt(0)')
    a('buffer_store_dwordx4 %s, v%d, %s, s57 offen%s' % (v(HO2, 4), hv, ws, sc))
    a('buffer_store_dwordx4 %s, v%d, %s, s58 offen%s' % (v(XO2, 4), xg, ws, sc))
    a('buffer_store_dwordx4 %s, v%d, %s, s59 offen%s' % (v(WO2, 4), wg, ws, sc))
    a.L('%s_p1skip2' % name)
    a('s_waitcnt lgkmcnt(0)')
    a('buffer_store_dwordx4 %s, v%d, %s, s54 offen%s' % (v(HO, 4), hv, ws, sc))
    a('buffer_store_dwordx4 %s, v%d, %s, s55 offen%s' % (v(XO, 4), xg, ws, sc))
    a('buffer_store_dwordx4 %s, v%d, %s, s56 offen%s' % (v(WO, 4), wg, ws, sc))
    a('s_mov_b64 s[%d:%d], exec' % (S_EX, S_EX + 1))
    a('s_mov_b64 exec, 1')
    a('buffer_store_dwordx2 %s, v%d, %s, s51 offen%s' % (v(gp, 2), t0, ws, sc))
    a('buffer_store_dwordx4 %s, v%d, %s, s52 offen%s' % (v(PQ, 4), t0, ws, sc))
    a('s_mov_b64 exec, s[%d:%d]' % (S_EX, S_EX + 1))
    a('s_cmp_lt_u32 s3, 4')
    a('s_cbranch_scc0 %s_p1nofi' % name)
    a('v_cmp_gt_u32 vcc, 200, v0')
    a('s_and_saveexec_b64 s[%d:%d], vcc' % (S_EX, S_EX + 1))
    a('s_mov_b32 s51, %d' % FI_OFF)
    a('buffer_store_dwordx4 %s, v%d, %s, s51 offen%s' % (v(C['FOUT'], 4), C['cid'], ws, sc))
    a('s_mov_b64 exec, s[%d:%d]' % (S_EX, S_EX + 1))
    a.L('%s_p1nofi' % name)

def get_nonce(a, name, V, C):
    NV = C['NV']
    m = V.mark(); z = V.a()
    a('s_mov_b32 s60, 0')
    a.L('%s_nonce' % name)
    a('v_readfirstlane_b32 s%d, v%d' % (S_NON, NV))
    a('v_readfirstlane_b32 s%d, v%d' % (S_NON + 1, NV + 1))
    a('s_cmp_lg_u32 s%d, 0' % (S_NON + 1))
    a('s_cbranch_scc1 %s_nonceok' % name)
    a('s_add_u32 s60, s60, 1')
    a('s_cmp_lt_u32 s60, %d' % SPIN_LIMIT)
    a('s_cbranch_scc0 %s_nonceok' % name)
    a('v_mov_b32 v%d, 0' % z)
    a('global_load_dwordx2 %s, v%d, s[%d:%d] sc1' % (v(NV, 2), z, P_DBG, P_DBG + 1))
    a('s_waitcnt vmcnt(0)')
    a('s_branch %s_nonce' % name)
    a.L('%s_nonceok' % name)
    V.reset(m)
```

```python
import sys
sys.path.insert(0, 'pk')
from cm import *
import cm, p1, gm, fft
NAME = 'gated_mix__spectral_gfnet__mixer_token_mlp__prompt'

def gen(a):
    name = NAME + '_kernel'
    V = RA('v', 1, 253 if CFG.prof else 256)
    a.T('.globl %s' % name); a.T('.p2align 8'); a.T('.type %s,@function' % name); a.L(name)
    nm = 'K'
    a('s_cmp_ge_u32 s2, 256')
    a('s_cbranch_scc1 %s_end' % nm)
    a('s_load_dwordx16 s[64:79], s[0:1], 0')
    a('s_load_dwordx8 s[80:87], s[0:1], 64')
    C = {'pfid': 0}
    lane = V.a(); tq = V.a(); h4 = V.a(); C.update(lane=lane, tq=tq, h4=h4)
    C['p3vA'] = V.a(); C['g1vA'] = V.a(); C['g1vB'] = V.a(); C['NV'] = V.a(2, 2)
    a('v_and_b32 v%d, 63, v0' % lane)
    a('v_lshrrev_b32 v%d, 6, v0' % tq)
    a('v_readfirstlane_b32 s3, v%d' % tq)
    a('v_and_b32 v%d, 15, v0' % tq)
    a('v_bfe_u32 v%d, v0, 4, 2' % h4)
    a('s_and_b32 s56, s2, 7'); a('s_lshr_b32 s57, s2, 3')
    a('s_lshr_b32 s58, s56, 1')
    a('s_cmp_eq_u32 s58, 3'); a('s_cselect_b32 s59, 24, 28')
    a('s_cmp_ge_u32 s57, s59'); a('s_cselect_b32 s%d, 1, 0' % S_ROLE)
    a('s_and_b32 s60, s56, 1'); a('s_lshl_b32 s60, s60, 2'); a('s_and_b32 s61, s57, 3'); a('s_add_u32 s%d, s60, s61' % S_MD1)
    a('s_mov_b32 s%d, s%d' % (S_MD3, S_MD1))
    a('s_mul_i32 s61, s58, 7'); a('s_lshr_b32 s62, s57, 2'); a('s_add_u32 s%d, s61, s62' % S_NF)
    a('s_lshl_b32 s61, s58, 3'); a('s_add_u32 s%d, s61, s62' % S_NS)
    a('s_sub_u32 s60, s57, s59')
    a('s_lshl_b32 s61, s56, 2'); a('s_add_u32 s61, s61, s60')
    a('s_sub_u32 s62, s56, 6'); a('s_lshl_b32 s62, s62, 3'); a('s_add_u32 s62, s62, s60'); a('s_add_u32 s62, s62, 24')
    a('s_cmp_ge_u32 s56, 6'); a('s_cselect_b32 s%d, s62, s61' % S_FID)
    a('s_waitcnt lgkmcnt(0)')
    srd(a, SRD_WS, P_WS, WS_END)
    prof_stamp(a, 0)
    a('s_or_b32 s60, s2, s3'); a('s_cmp_eq_u32 s60, 0')
    a('s_cbranch_scc0 %s_nononce' % nm)
    a('s_memrealtime s[60:61]')
    m = V.mark(); d = V.a(2, 2); z = V.a()
    a('s_waitcnt lgkmcnt(0)')
    a('s_or_b32 s61, s61, 0x40000000')
    a('v_mov_b32 v%d, s60' % d); a('v_mov_b32 v%d, s61' % (d + 1)); a('v_mov_b32 v%d, 0' % z)
    a('s_mov_b64 s[%d:%d], exec' % (S_EX, S_EX + 1)); a('s_mov_b64 exec, 1')
    a('global_store_dwordx2 v%d, %s, s[%d:%d] sc1' % (z, v(d, 2), P_DBG, P_DBG + 1))
    a('s_mov_b64 exec, s[%d:%d]' % (S_EX, S_EX + 1))
    V.reset(m)
    a.L('%s_nononce' % nm)
    base = V.mark()
    q = VQ(a)
    p1.p1_issue(a, V, C, q)
    gm.g1_prefetch(a, V, C, q)
    p1.p1_consts(a, V, C)
    def mid():
        a('s_cmp_eq_u32 s%d, 0' % S_ROLE)
        a('s_cbranch_scc0 %s_nopf' % nm)
        gm.g1_issue0(a, V, C)
        a.L('%s_nopf' % nm)
    p1.p1_compute(a, nm, V, C, 12, mid)
    prof_stamp(a, 2)
    V.reset(base)
    a('s_cmp_eq_u32 s%d, 0' % S_ROLE)
    a('s_cbranch_scc0 %s_fft' % nm)
    mk = V.mark()
    gm.get_nonce_fn = lambda a_, name_, V_, C_: p1.get_nonce(a_, name_ + 'g', V_, C_)
    gm.g1_main(a, nm, V, C, q)
    a('s_branch %s_p3' % nm)
    V.reset(mk)
    a.L('%s_fft' % nm)
    a('s_waitcnt vmcnt(0)')
    a('s_barrier')
    p1.get_nonce(a, nm + 'f', V, C)
    a('s_cmp_eq_u32 s3, 0')
    a('s_cbranch_scc0 %s_nofl1f' % nm)
    a('s_mul_i32 s58, s2, %d' % FS); a('s_add_u32 s58, s58, %d' % FL1_OFF)
    store_flag(a, V, 58)
    a.L('%s_nofl1f' % nm)
    prof_stamp(a, 1)
    fft.fft_tables(a, V, C)
    fft.fft_main(a, nm, V, C)
    a('s_waitcnt vmcnt(0)')
    a('s_barrier')
    a('s_cmp_eq_u32 s3, 0')
    a('s_cbranch_scc0 %s_nofl2f' % nm)
    a('s_mul_i32 s58, s%d, %d' % (S_FID, FS)); a('s_add_u32 s58, s58, %d' % FLZ_OFF)
    store_flag(a, V, 58)
    a.L('%s_nofl2f' % nm)
    prof_stamp(a, 4)
    gm.p3_prefetch(a, nm, V, C)
    V.reset(base)
    a.L('%s_p3' % nm)
    gm.p3_main(a, nm, V, C)
    a.L('%s_end' % nm)
    a('s_endpgm')
    return V.hi

def build(path, prof=False):
    CFG.prof = prof
    a = Asm()
    n = gen(a)
    npad = a.pad()
    hdr = open('cdna_kernels/%s.s.ref' % NAME).read().split('\n')
    hdr = [l for l in hdr if l.startswith('; Kernarg') or l.startswith(';   offset')]
    vg = 256
    txt = '\n'.join(hdr) + '\n; @launch grid=(256,1,1) block=(512,1,1) lds=%d\n' % LDS_TOTAL
    txt += '.amdgcn_target "amdgcn-amd-amdhsa--gfx950"\n.text\n' + a.text()
    txt += '.section .rodata,"a"\n.p2align 6\n.amdhsa_kernel %s_kernel\n  .amdhsa_next_free_vgpr %d\n  .amdhsa_next_free_sgpr 102\n  .amdhsa_accum_offset %d\n  .amdhsa_group_segment_fixed_size 0\n  .amdhsa_kernarg_size 96\n  .amdhsa_user_sgpr_count 2\n  .amdhsa_user_sgpr_kernarg_segment_ptr 1\n  .amdhsa_system_sgpr_workgroup_id_x 1\n.end_amdhsa_kernel\n' % (NAME, vg, vg)
    open(path, 'w').write(txt)
    print('wrote', path, 'vgpr hi', n, 'nops', npad, 'bytes', len(txt))

if __name__ == '__main__':
    build(sys.argv[1], prof=(len(sys.argv) > 2 and sys.argv[2] == 'prof'))
```
